```python
import torch

def _softmax(x, axis=-1):
    return torch.softmax(x, dim=axis)
def _gelu(x):
    return torch.nn.functional.gelu(x, approximate="tanh")
def _silu(x):
    return torch.nn.functional.silu(x)
def _sigmoid(x):
    return torch.sigmoid(x)
def _layernorm(x, axis=-1, eps=1e-5):
    m = x.mean(dim=axis, keepdim=True)
    v = x.var(dim=axis, keepdim=True, unbiased=False)
    return (x - m) / torch.sqrt(v + eps)
def _scatter_add(tgt, idx, src, axis=0):
    return tgt.clone().index_add_(axis, idx, src)
def _segment_sum(src, seg, n):
    out = torch.zeros((n,) + src.shape[1:], dtype=src.dtype)
    return out.index_add_(0, seg, src)
def _pad(x, pw):
    flat = tuple(v for pair in reversed(pw) for v in pair)
    return torch.nn.functional.pad(x, flat)

kernel_name = 'standalone__mha_block_cached__near_ridge'

def setup_inputs():

    _w = (lambda a: (lambda t: t.to(torch.bfloat16) if t.is_floating_point() else t)(torch.as_tensor(a)))
    B, Sq, D = 8, 256, 640
    H, Sk, Dh = 32, 1024, 192
    return {
        "x": _w((lambda *s: torch.randn(*s, dtype=torch.bfloat16) * 0.8)(B, Sq, D)),
        "k_cache": _w((lambda *s: torch.randn(*s, dtype=torch.bfloat16) * 0.8)(B, H, Sk, Dh)),
        "v_cache": _w((lambda *s: torch.randn(*s, dtype=torch.bfloat16) * 0.05)(B, H, Sk, Dh)),
        "wq": _w((lambda *s: torch.randn(*s, dtype=torch.bfloat16) * 0.8)(D, H * Dh) * (D ** -0.5)),
        "wo": _w((lambda *s: torch.randn(*s, dtype=torch.bfloat16) * 0.05)(H * Dh, D) * ((H * Dh) ** -0.5)),
    }

def reference(x, k_cache, v_cache, wq, wo):
    B, Sq, D = x.shape
    H, Dh = 32, 192
    q = (lambda x, *d: x.permute(*d))((x @ wq).reshape(B, Sq, H, Dh), 0, 2, 1, 3)
    scores = torch.einsum("bhqd,bhkd->bhqk", q, k_cache) * (Dh ** -0.5)
    p = _softmax(scores, axis=-1)
    o = torch.einsum("bhqk,bhkd->bhqd", p, v_cache)
    return (lambda x, *d: x.permute(*d))(o, 0, 2, 1, 3).reshape(B, Sq, H * Dh) @ wo
```

```python
def R(p, base, n=1):
    return [f"{p}{base+i}" for i in range(n)]
def rr(p, base, n):
    return f"{p}{base}" if n == 1 else f"{p}[{base}:{base+n-1}]"

class E:
    def __init__(self):
        self.lines = []
        self.hist = []
        self.pos = 0
        self.lg = []
        self.vm = []
        self.nmfma = 0
    def raw(self, t):
        self.lines.append(t)
    def label(self, l):
        self.lines.append(f"{l}:")
    def comment(self, t):
        self.lines.append(f"  ; {t}")
    def _nop(self, n):
        while n > 0:
            k = min(n, 16)
            self.lines.append(f"  s_nop {k-1}")
            self.pos += k
            n -= k
    def state(self):
        return (list(self.hist), self.pos, [set(x) for x in self.lg], [(t, set(d)) for t, d in self.vm])
    def set_state(self, st):
        self.hist = list(st[0]); self.pos = st[1]
        self.lg = [set(x) for x in st[2]]; self.vm = [(t, set(d)) for t, d in st[3]]
    def clear_hazards(self, n=16):
        self._nop(n); self.hist = []
    def wait_lg(self, n):
        n = min(n, 15)
        if len(self.lg) > n:
            self.lines.append(f"  s_waitcnt lgkmcnt({n})"); self.pos += 1
            self.lg = self.lg[len(self.lg)-n:] if n > 0 else []
    def wait_lg_regs(self, regs):
        regs = set(regs); need = None
        for i, d in enumerate(self.lg):
            if d & regs: need = i
        if need is not None: self.wait_lg(len(self.lg) - 1 - need)
    def wait_vm(self, n):
        assert n <= 63
        if len(self.vm) > n:
            self.lines.append(f"  s_waitcnt vmcnt({n})"); self.pos += 1
            self.vm = self.vm[len(self.vm)-n:] if n > 0 else []
    def wait_vm_raw(self, n):
        self.lines.append(f"  s_waitcnt vmcnt({n})"); self.pos += 1
        if len(self.vm) > n:
            self.vm = self.vm[len(self.vm)-n:] if n > 0 else []
    def wait_vm_tag(self, tag):
        idx = [i for i, (t, d) in enumerate(self.vm) if t == tag]
        if idx:
            self.wait_vm(len(self.vm) - 1 - idx[-1])
    def ins(self, text, kind, rd=(), wr=(), cread=(), passes=8):
        rd = set(rd); wr = set(wr); cread = set(cread)
        touched = rd | wr
        need = None
        for i, d in enumerate(self.lg):
            if d & touched: need = i
        if need is not None: self.wait_lg(len(self.lg) - 1 - need)
        need = None
        for i, (t, d) in enumerate(self.vm):
            if d & touched: need = i
        if need is not None: self.wait_vm(len(self.vm) - 1 - need)
        req = 0
        for (p, k, prd, pwr, pc, pps) in self.hist:
            dist = self.pos - p - 1
            n = 0
            isv = kind in ('valu', 'trans', 'perm', 'rfl')
            if k == 'mfma':
                lat = {8: 12, 4: 8}[pps]
                if kind == 'mfma':
                    if pwr & (rd - cread): n = max(n, lat)
                    if pwr & cread:
                        if pwr != cread: n = max(n, lat - 2)
                elif isv or kind in ('ds', 'vmem'):
                    if pwr & touched: n = max(n, lat)
                    if isv and (pc & wr): n = max(n, {8: 7, 4: 3}[pps])
                    if kind in ('ds', 'vmem') and (pc & wr): n = max(n, {8: 7, 4: 3}[pps])
            elif k in ('valu', 'trans', 'perm'):
                if kind == 'mfma' and (pwr & rd): n = max(n, 2)
                if kind == 'perm' and (pwr & touched): n = max(n, 2)
                if kind == 'rfl' and (pwr & rd): n = max(n, 1)
                if k == 'trans' and kind != 'trans' and (pwr & rd): n = max(n, 1)
                sg = {x for x in pwr if x[0] == 's' or x == 'vcc'}
                if sg & rd:
                    if isv: n = max(n, 2)
                    if kind in ('vmem',): n = max(n, 5)
            elif k == 'rfl':
                if pwr & rd:
                    if isv: n = max(n, 2)
                    elif kind == 'vmem': n = max(n, 5)
                    else: n = max(n, 3)
            elif k == 'vmemst':
                if isv and (prd & wr): n = max(n, 2)
            elif k == 'm0w':
                if kind == 'vmem' and 'm0' in rd: n = max(n, 1)
            req = max(req, n - dist)
        if req > 0: self._nop(req)
        self.lines.append("  " + text)
        hk = kind
        if kind == 'vmem' and text.startswith(('buffer_store', 'global_store')): hk = 'vmemst'
        if kind == 'salu' and 'm0' in wr: hk = 'm0w'
        self.hist.append((self.pos, hk, rd, wr, cread, passes))
        self.pos += 1
        if len(self.hist) > 24: self.hist = self.hist[-24:]
        if kind == 'mfma': self.nmfma += 1
    def mfma(self, d, a, b, c=None):
        D = R(d[0], d[1], 16); A = R(a[0], a[1], 4); B = R(b[0], b[1], 4)
        if c is None: c = d
        if c == 0:
            self.ins(f"v_mfma_f32_32x32x16_bf16 {rr(d[0],d[1],16)}, {rr(a[0],a[1],4)}, {rr(b[0],b[1],4)}, 0", 'mfma', A + B, D)
        else:
            C = R(c[0], c[1], 16)
            self.ins(f"v_mfma_f32_32x32x16_bf16 {rr(d[0],d[1],16)}, {rr(a[0],a[1],4)}, {rr(b[0],b[1],4)}, {rr(c[0],c[1],16)}", 'mfma', A + B + C, D, C)
    def ds_read(self, op, d, n, addr, off):
        assert 0 <= off < 65536, off
        D = R(d[0], d[1], n)
        self.ins(f"{op} {rr(d[0],d[1],n)}, v{addr} offset:{off}", 'ds', [f"v{addr}"], D)
        self.lg.append(set(D))
    def ds_b128(self, d, addr, off): self.ds_read("ds_read_b128", d, 4, addr, off)
    def ds_tr(self, d, addr, off): self.ds_read("ds_read_b64_tr_b16", d, 2, addr, off)
    def ds_write128(self, addr, s, off):
        assert 0 <= off < 65536
        self.ins(f"ds_write_b128 v{addr}, {rr(s[0],s[1],4)} offset:{off}", 'ds', [f"v{addr}"] + R(s[0], s[1], 4), [])
        self.lg.append(set())
    def dma(self, voff, srd, soff, imm, tag, nt=False):
        assert 0 <= imm < 4096
        so = f"s{soff}" if isinstance(soff, int) else soff
        self.ins(f"buffer_load_dwordx4 v{voff}, s[{srd}:{srd+3}], {so} offen offset:{imm}{' nt' if nt else ''} lds", 'vmem', [f"v{voff}", 'm0', so], [])
        self.vm.append((tag, set()))
    def bload(self, d, voff, srd, soff, imm, tag='ld', flags=''):
        so = f"s{soff}" if isinstance(soff, int) else soff
        D = R(d[0], d[1], 4)
        self.ins(f"buffer_load_dwordx4 {rr(d[0],d[1],4)}, v{voff}, s[{srd}:{srd+3}], {so} offen offset:{imm}{flags}", 'vmem', [f"v{voff}", so], D)
        self.vm.append((tag, set(D)))
    def bstore(self, s, voff, srd, soff, imm, n=4, flags=''):
        so = f"s{soff}" if isinstance(soff, int) else soff
        sfx = {4: 'x4', 2: 'x2', 1: ''}[n]
        S = R(s[0], s[1], n)
        self.ins(f"buffer_store_dword{sfx} {rr(s[0],s[1],n)}, v{voff}, s[{srd}:{srd+3}], {so} offen offset:{imm}{flags}", 'vmem', [f"v{voff}", so] + S, [])
        self.vm.append(('st', set()))
    def salu(self, text, rd=(), wr=()): self.ins(text, 'salu', rd, wr)
    def m0(self, text): self.ins(text, 'salu', [], ['m0'])
    def valu(self, op, d, *srcs, kind='valu'):
        rd = [s.lstrip('-') for s in srcs if isinstance(s, str) and s.lstrip('-')[:1] in 'vas' and s.lstrip('-')[1:].isdigit()]
        rd += [s for s in srcs if s == 'vcc']
        self.ins(f"{op} {d}, " + ", ".join(str(s) for s in srcs), kind, rd, [d])
    def trans(self, op, d, s): self.valu(op, d, s, kind='trans')
    def barrier(self): self.ins("s_barrier", 'salu')

def weave(e, mfmas, fillers):
    for g, m in enumerate(mfmas):
        m()
        for f in fillers.get(g, []): f()

def spread(fill, ops, g0, g1, cost=None):
    n = g1 - g0 + 1
    if cost is None: cost = [1.0] * len(ops)
    tot = sum(cost); acc = 0.0
    for o, c in zip(ops, cost):
        g = g0 + min(n - 1, int((acc + 0.5 * c) / tot * n))
        fill.setdefault(g, []).append(o)
        acc += c
```

```python
from emit import *
import struct
def f32bits(x): return struct.unpack('<I', struct.pack('<f', x))[0]

KR, VR, SPARE = 0, 73728, 147456
TILE = 12288
SX, SWQ, SK, SV, SO = 4, 8, 12, 16, 20
sW, sB, sH, sBH, sW3, sXB, sSRC, sCNT, sFLAG = 24, 25, 26, 27, 28, 29, 30, 31, 32
sC = 34
vK = [2, 3, 4, 5]; vVlo = [6, 7]; vVhi = [8, 9]; vKs = [10, 11, 12]; vVs = [13, 14, 15]
vL = [16, 17]; vTM = 18; vAL = [19, 20]
NEGM = 32; SB = 64; QF = 160
vX = [16, 17, 18, 19]; vWa = [20, 21]; vXs = list(range(22, 30)); vWs = [2, 3, 4]
KF = 192; VF = 208
XS1 = 192; WF = 224
THR = 8.0
NT_KV = True

def Sreg(p, a): return SB + p * 32 + a * 16
def Oreg(T, a): return (T * 2 + a) * 16
def Qfrag(a, t): return QF + ((t >> 1) * 2 + a) * 8 + 4 * (t & 1)

def srd(e, s, lo, hi, nrec):
    e.salu(f"s_mov_b32 s{s}, s{lo}"); e.salu(f"s_and_b32 s{s+1}, s{hi}, 0xffff")
    e.salu(f"s_mov_b32 s{s+2}, {nrec}"); e.salu(f"s_mov_b32 s{s+3}, 0x20000")

def add64(e, lo, hi, off):
    e.salu(f"s_add_u32 s{lo}, s{lo}, s{off}"); e.salu(f"s_addc_u32 s{hi}, s{hi}, 0")

def tile_src(e, dst, jj, mode, rowstride, extra, t0=64):
    V = e.valu
    L, key, p, c, t = (f"v{t0+i}" for i in range(5))
    V("v_mov_b32", L, f"s{sW}"); V("v_mul_u32_u24", L, 192, L); V("v_add_u32", L, L, "v1")
    V("v_add_u32", L, 64 * jj, L)
    V("v_mul_u32_u24", key, 2731, L); V("v_lshrrev_b32", key, 16, key)
    V("v_mul_u32_u24", t, 24, key); V("v_sub_u32", p, L, t)
    if mode == 'K':
        V("v_lshrrev_b32", t, 1, key); V("v_and_b32", t, 7, t); V("v_xor_b32", c, p, t)
    else:
        V("v_lshlrev_b32", t, 1, key); V("v_and_b32", t, 4, t); V("v_xor_b32", c, p, t)
    e.salu(f"s_mov_b32 s36, {rowstride}")
    V("v_mul_lo_u32", t, key, "s36"); V("v_lshlrev_b32", c, 4, c); V("v_add_u32", t, t, c)
    V("v_add_u32", f"v{dst}", (extra - 1024 * jj) & 0xffffffff, t)

def tr_addr(e, dE, dO, base, rowmul_hh, perm, t0=64):
    V = e.valu
    g1, hh, r, c, s, t, u = (f"v{t0+i}" for i in range(7))
    V("v_bfe_u32", g1, "v1", 4, 1); V("v_lshrrev_b32", hh, 5, "v1")
    V("v_bfe_u32", r, "v1", 2, 2); V("v_and_b32", c, 3, "v1")
    V("v_lshrrev_b32", s, 1, r)
    V("v_mul_u32_u24", t, rowmul_hh, hh); V("v_add_u32", t, t, r); V("v_mul_u32_u24", t, 384, t)
    V("v_lshlrev_b32", u, 5, g1); V("v_add_u32", t, t, u)
    if perm == 'id':
        V("v_lshlrev_b32", u, 3, c); V("v_add_u32", t, t, u)
    else:
        V("v_and_b32", u, 1, c); V("v_lshlrev_b32", u, 4, u); V("v_add_u32", t, t, u)
        V("v_lshrrev_b32", u, 1, c); V("v_lshlrev_b32", u, 3, u); V("v_add_u32", t, t, u)
    V("v_add_u32", t, base, t)
    V("v_lshlrev_b32", u, 6, s)
    V("v_add_u32", f"v{dE}", t, u)
    V("v_sub_u32", f"v{dO}", t, u); V("v_add_u32", f"v{dO}", 64, f"v{dO}")

def softmax_group(e, p, a, u):
    b = Sreg(p, a) + 8 * u; l = f"v{vL[a]}"
    ex = lambda i: (lambda: e.trans("v_exp_f32", f"v{b+i}", f"v{b+i}"), 2.0)
    ad = lambda i: (lambda: e.valu("v_add_f32", l, l, f"v{b+i}"), 1.0)
    cv = lambda j: (lambda: e.valu("v_cvt_pk_bf16_f32", f"v{b+j}", f"v{b+2*j}", f"v{b+2*j+1}"), 1.0)
    return [ex(0), ex(1), ex(2), ad(0), ad(1), cv(0), ex(3), ad(2), ex(4), ad(3), cv(1), ex(5), ad(4), ex(6), ad(5), cv(2), ex(7), ad(6), ad(7), cv(3)]

def fix_group(g):
    return g

def max_ops(e, p):
    regs = [f"v{Sreg(p,0)+i}" for i in range(32)]
    ops = []; tm = f"v{vTM}"
    ops.append((lambda: e.valu("v_max3_f32", tm, regs[0], regs[1], regs[2]), 1.0))
    i = 3
    while i < 32:
        if i + 1 < 32:
            ops.append((lambda i=i: e.valu("v_max3_f32", tm, tm, regs[i], regs[i+1]), 1.0)); i += 2
        else:
            ops.append((lambda i=i: e.valu("v_max_f32", tm, tm, regs[i]), 1.0)); i += 1
    return ops

def rare1(e, p, first):
    V = e.valu
    for a in range(2):
        b = Sreg(p, a); tm, t2, d = "v21", "v22", "v23"
        V("v_max3_f32", tm, f"v{b}", f"v{b+1}", f"v{b+2}")
        for i in range(3, 15, 2): V("v_max3_f32", tm, tm, f"v{b+i}", f"v{b+i+1}")
        V("v_max_f32", tm, tm, f"v{b+15}")
        V("v_mov_b32", t2, tm)
        e.ins(f"v_permlane32_swap_b32 {tm}, {t2}", 'perm', [tm, t2], [tm, t2])
        V("v_max_f32", d, tm, t2)
        if not first: V("v_max_f32", d, 0, d)
        for i in range(16): V("v_sub_f32", f"v{b+i}", f"v{b+i}", d)
        if first:
            for i in range(16): V("v_sub_f32", f"v{NEGM+16*a+i}", 0, d)
            V("v_mov_b32", f"v{vL[a]}", 0)
        else:
            for i in range(16): V("v_sub_f32", f"v{NEGM+16*a+i}", f"v{NEGM+16*a+i}", d)
            e.ins(f"v_exp_f32 v{vAL[a]}, -{d}", 'trans', [d], [f"v{vAL[a]}"])
            V("v_mul_f32", f"v{vL[a]}", f"v{vL[a]}", f"v{vAL[a]}")

def kread(e, slot, t):
    return lambda: e.ds_b128(('a', KF + 4 * (t % 4)), vK[t & 3], slot * TILE + (t >> 2) * 128)
def vread(e, slot, f, half):
    u, T = divmod(f, 6)
    va = (vVlo if slot < 3 else vVhi)[T & 1]
    off = (slot % 3) * TILE + (16 * u + 8 * half) * 384 + (T >> 1) * 128
    return lambda: e.ds_tr(('a', VF + 4 * (f % 4) + 2 * half), va, off)

def iteration(e, r, qk=True, nxt=True, dma=True, uid=""):
    p = r & 1; pn = 1 - p
    e.wait_vm_raw(21); e.barrier()
    mf = []; fill = {}
    for t in range(12):
        for a in range(2):
            if qk:
                mf.append(lambda t=t, a=a: e.mfma(('v', Sreg(pn, a)), ('a', KF + 4 * (t % 4)), ('v', Qfrag(a, t)), ('v', NEGM + 16 * a) if t == 0 else None))
            else:
                mf.append(lambda: None)
    for f in range(12):
        u, T = divmod(f, 6)
        for a in range(2):
            mf.append(lambda f=f, u=u, T=T, a=a: e.mfma(('a', Oreg(T, a)), ('a', VF + 4 * (f % 4)), ('v', Sreg(p, a) + 8 * u)))
    add = lambda g, f: fill.setdefault(g, []).append(f)
    if qk:
        for t in range(3, 12): add(2 * (t - 3), kread(e, (r + 1) % 6, t))
    for f in range(12):
        add(24 + 2 * (f - 3), vread(e, r % 6, f, 0)); add(24 + 2 * (f - 3) + 1, vread(e, r % 6, f, 1))
    if nxt:
        for t in range(3): add(42 + 2 * t, kread(e, (r + 2) % 6, t))
    if dma:
        nt = NT_KV
        add(1, lambda: e.m0(f"s_add_u32 m0, s{sW3}, {KR + r * TILE}"))
        for jj in range(3): add(1 + 2 * jj, lambda jj=jj: e.dma(vKs[jj], SK, sSRC, 1024 * jj, 'kv', nt))
        add(7, lambda: e.m0(f"s_add_u32 m0, s{sW3}, {VR + ((r + 5) % 6) * TILE}"))
        for jj in range(3): add(7 + 2 * jj, lambda jj=jj: e.dma(vVs[jj], SV, sSRC, 1024 * jj, 'kv', nt))
        add(13, lambda: e.salu(f"s_add_u32 s{sSRC}, s{sSRC}, {TILE}"))
    ops = softmax_group(e, p, 0, 1) + softmax_group(e, p, 1, 1)
    spread(fill, [o for o, c in ops], 0, 23, [c for o, c in ops])
    if qk:
        ops = max_ops(e, pn)
        spread(fill, [o for o, c in ops], 27, 31)
        def check():
            e.ins(f"v_cmp_lt_f32 vcc, 0x{f32bits(THR):08x}, v{vTM}", 'valu', [f"v{vTM}"], ['vcc'])
            e.salu(f"s_cbranch_vccz L_ok1_{uid}")
            e.salu(f"s_call_b64 s[36:37], L_rare1_{pn}")
            e.label(f"L_ok1_{uid}")
        add(31, check)
        ops = softmax_group(e, pn, 0, 0) + softmax_group(e, pn, 1, 0)
        spread(fill, [o for o, c in ops], 32, 47, [c for o, c in ops])
    weave(e, mf, fill)
    if qk:
        e.salu(f"s_cmp_eq_u32 s{sFLAG}, 0")
        e.salu(f"s_cbranch_scc1 L_ok2_{uid}")
        e.salu(f"s_call_b64 s[36:37], L_rare2")
        e.label(f"L_ok2_{uid}")

def gen_k1(e):
    V = e.valu
    e.raw(".p2align 8"); e.raw(".type attn_kernel,@function"); e.label("attn_kernel")
    e.salu("s_cmp_ge_u32 s2, 256"); e.salu("s_cbranch_scc1 L_k1_end")
    e.salu("s_load_dwordx8 s[40:47], s[0:1], 0"); e.salu("s_load_dwordx2 s[48:49], s[0:1], 56")
    V("v_and_b32", "v1", 63, "v0"); V("v_lshrrev_b32", "v2", 6, "v0")
    e.ins(f"v_readfirstlane_b32 s{sW}, v2", 'rfl', ["v2"], [f"s{sW}"])
    e.salu("s_and_b32 s36, s2, 7"); e.salu("s_lshr_b32 s37, s2, 3")
    e.salu("s_and_b32 s38, s36, 1"); e.salu("s_lshl_b32 s38, s38, 2"); e.salu("s_and_b32 s39, s37, 3"); e.salu(f"s_add_u32 s{sB}, s38, s39")
    e.salu("s_lshr_b32 s38, s36, 1"); e.salu("s_lshl_b32 s38, s38, 3"); e.salu("s_lshr_b32 s39, s37, 2"); e.salu(f"s_add_u32 s{sH}, s38, s39")
    e.salu(f"s_lshl_b32 s{sBH}, s{sB}, 5"); e.salu(f"s_add_u32 s{sBH}, s{sBH}, s{sH}")
    e.salu(f"s_mul_i32 s{sW3}, s{sW}, 3072", rd=[f"s{sW}"])
    e.salu(f"s_lshl_b32 s36, s{sW}, 13"); e.salu(f"s_add_u32 s37, s36, {SPARE}"); e.salu(f"s_add_u32 s38, s36, {49152 - 16384}")
    e.salu(f"s_cmp_lt_u32 s{sW}, 2"); e.salu(f"s_cselect_b32 s{sXB}, s37, s38")
    cbits = f32bits((192 ** -0.5) * 1.4426950408889634)
    e.salu(f"s_mov_b32 s{sC}, 0x{cbits:08x}"); e.salu(f"s_mov_b32 s{sC+1}, 0x{cbits:08x}")
    e.salu(f"s_mov_b32 s{sFLAG}, 0")
    e.raw("  s_waitcnt lgkmcnt(0)")
    e.salu(f"s_mul_i32 s36, s{sB}, 327680"); add64(e, 40, 41, 36); srd(e, SX, 40, 41, 327680)
    e.salu(f"s_mul_i32 s36, s{sBH}, 393216"); add64(e, 42, 43, 36); srd(e, SK, 42, 43, 393216)
    add64(e, 44, 45, 36); srd(e, SV, 44, 45, 393216)
    e.salu(f"s_mul_i32 s36, s{sH}, 384"); add64(e, 46, 47, 36); srd(e, SWQ, 46, 47, 0)
    e.salu(f"s_sub_u32 s{SWQ+2}, 7864320, s36")
    e.salu(f"s_mul_i32 s36, s{sBH}, 98304"); add64(e, 48, 49, 36); srd(e, SO, 48, 49, 98304)
    for jj in range(3): tile_src(e, vWs[jj], jj, 'V', 12288, 0)
    for j in range(8):
        V("v_lshrrev_b32", "v64", 3, "v1"); V("v_add_u32", "v64", 8 * j, "v64")
        V("v_bfe_u32", "v65", "v64", 1, 3); V("v_and_b32", "v66", 7, "v1"); V("v_xor_b32", "v65", "v65", "v66")
        V("v_mov_b32", "v66", f"s{sW}"); V("v_lshlrev_b32", "v66", 6, "v66"); V("v_add_u32", "v64", "v64", "v66")
        V("v_mul_u32_u24", "v64", 1280, "v64"); V("v_lshlrev_b32", "v65", 4, "v65"); V("v_add_u32", "v64", "v64", "v65")
        V("v_subrev_u32", f"v{vXs[j]}", (j & 3) * 1024, "v64")
    def dma_x(c):
        e.salu(f"s_mov_b32 s38, {c * 128}")
        for j in range(8):
            if j % 4 == 0: e.m0(f"s_add_u32 m0, s{sXB}, {j * 1024}")
            e.dma(vXs[j], SX, 38, (j & 3) * 1024, f"x{c}")
    def dma_w(hc):
        e.salu(f"s_mov_b32 s39, {hc * 32 * 12288}")
        e.m0(f"s_add_u32 m0, s{sW3}, {VR + (2 + hc % 4) * TILE}")
        for jj in range(3): e.dma(vWs[jj], SWQ, 39, 1024 * jj, f"w{hc}")
    def dma_kv(which, tile, slot):
        e.salu(f"s_mov_b32 s39, {tile * TILE}")
        e.m0(f"s_add_u32 m0, s{sW3}, {(KR if which == 'K' else VR) + slot * TILE}")
        for jj in range(3):
            e.dma((vKs if which == 'K' else vVs)[jj], SK if which == 'K' else SV, 39, 1024 * jj, f"{which}{tile}", NT_KV)
    dma_x(0); dma_w(0); dma_w(1); dma_w(2)
    for jj in range(3): tile_src(e, vKs[jj], jj, 'K', 384, 0)
    for jj in range(3): tile_src(e, vVs[jj], jj, 'V', 384, 0)
    V("v_and_b32", "v64", 31, "v1"); V("v_lshrrev_b32", "v65", 5, "v1"); V("v_bfe_u32", "v66", "v64", 1, 3)
    V("v_xor_b32", "v65", "v65", "v66"); V("v_lshlrev_b32", "v65", 4, "v65"); V("v_lshlrev_b32", "v64", 7, "v64")
    V("v_add_u32", "v64", f"s{sXB}", "v64")
    for t in range(4):
        V("v_xor_b32", "v66", 32 * t, "v65"); V("v_add_u32", f"v{vX[t]}", "v64", "v66")
    tr_addr(e, vWa[0], vWa[1], VR + 2 * TILE, 8, 'q')
    def xset(c): return ('v', 32) if c % 2 == 0 else ('a', XS1)
    def read_x(c):
        ops = []
        for a in range(2):
            for t in range(4):
                ops.append(lambda a=a, t=t: e.ds_b128((xset(c)[0], xset(c)[1] + (a * 4 + t) * 4), vX[t], a * 4096))
        return ops
    def wread(hc, f, half):
        t, T = divmod(f, 6)
        off = (hc % 4) * TILE + (16 * t + 4 * half) * 384 + (T >> 1) * 128
        gf = hc * 12 + f
        return lambda: e.ds_tr(('a', WF + 4 * (gf % 6) + 2 * half), vWa[T & 1], off)
    e.wait_vm_tag("x0")
    for o in read_x(0): o()
    e.wait_lg(0)
    dma_x(1)
    e.wait_vm_tag("w0"); e.barrier()
    PF = 4
    for f in range(PF): wread(0, f, 0)(); wread(0, f, 1)()
    zero_a = list(range(192))
    kv_early = {1: ('K', 0), 3: ('K', 1), 5: ('V', 0), 7: ('K', 2), 9: ('K', 3), 11: ('V', 1)}
    for hc in range(20):
        c = hc // 2
        e.wait_vm_tag(f"w{hc+1}"); e.barrier()
        mf = []; fill = {}
        add = lambda g, f: fill.setdefault(g, []).append(f)
        for f in range(12):
            t, T = divmod(f, 6); tt = (hc % 2) * 2 + t; gf = hc * 12 + f
            for a in range(2):
                xs = xset(c)
                mf.append(lambda T=T, a=a, tt=tt, gf=gf, xs=xs: e.mfma(('v', 64 + (T * 2 + a) * 16), ('a', WF + 4 * (gf % 6)), (xs[0], xs[1] + (a * 4 + tt) * 4), 0 if (hc == 0 and tt == 0) else None))
            nf = f + PF
            nhc, nf2 = (hc, nf) if nf < 12 else (hc + 1, nf - 12)
            if nhc < 20:
                add(2 * f + 1, wread(nhc, nf2, 0)); add(2 * f + 1, wread(nhc, nf2, 1))
        if hc + 3 < 20: add(0, lambda: dma_w(hc + 3))
        if hc % 2 == 1 and c + 1 < 10:
            add(2, lambda: e.wait_vm_tag(f"x{c+1}"))
            for k, o in enumerate(read_x(c + 1)): add(2 + k, o)
            if c + 2 < 10:
                add(16, lambda: (e.wait_lg_regs(R(xset(c + 1)[0], xset(c + 1)[1], 32)), dma_x(c + 2)))
        if hc in kv_early:
            wh, tl = kv_early[hc]; add(8, lambda wh=wh, tl=tl: dma_kv(wh, tl, tl))
        if hc == 17: add(4, lambda: dma_kv('V', 2, 2))
        if hc == 18:
            add(2, lambda: dma_kv('K', 4, 4)); add(8, lambda: dma_kv('V', 3, 3)); add(14, lambda: dma_kv('K', 5, 5))
        if hc == 19: add(2, lambda: dma_kv('V', 4, 4))
        for k in range(10):
            if zero_a:
                r_ = zero_a.pop(0); add(2 * k + 2, lambda r_=r_: e.ins(f"v_accvgpr_write_b32 a{r_}, 0", 'valu', [], [f"a{r_}"]))
        weave(e, mf, fill)
    assert not zero_a
    for j in range(190, -1, -2):
        e.ins(f"v_pk_mul_f32 v[{64+j}:{65+j}], v[{64+j}:{65+j}], s[{sC}:{sC+1}]", 'valu', [f"v{64+j}", f"v{65+j}"], [f"v{64+j}", f"v{65+j}"])
        V("v_cvt_pk_bf16_f32", f"v{QF + j // 2}", f"v{64+j}", f"v{65+j}")
    V("v_and_b32", "v64", 31, "v1"); V("v_lshrrev_b32", "v65", 5, "v1"); V("v_bfe_u32", "v66", "v64", 1, 3)
    V("v_xor_b32", "v65", "v65", "v66"); V("v_lshlrev_b32", "v65", 4, "v65"); V("v_mul_u32_u24", "v64", 384, "v64")
    for k in range(4):
        V("v_xor_b32", "v66", 32 * k, "v65"); V("v_add_u32", f"v{vK[k]}", "v64", "v66")
    tr_addr(e, vVlo[0], vVlo[1], VR, 4, 'id')
    for k in range(2): V("v_add_u32", f"v{vVhi[k]}", 3 * TILE, f"v{vVlo[k]}")
    for i in range(32): V("v_mov_b32", f"v{NEGM+i}", 0)
    for jj in range(3): V("v_add_u32", f"v{vKs[jj]}", TILE, f"v{vKs[jj]}")
    e.salu(f"s_mov_b32 s{sSRC}, {5 * TILE}")
    e.wait_vm_tag("K1"); e.barrier()
    for t in range(12):
        if t == 0:
            for tt in range(3): kread(e, 0, tt)()
        if t + 3 < 12: kread(e, 0, t + 3)()
        for a in range(2):
            e.mfma(('v', Sreg(0, a)), ('a', KF + 4 * (t % 4)), ('v', Qfrag(a, t)), ('v', NEGM + 16 * a) if t == 0 else None)
    rare1(e, 0, True)
    for o, c in softmax_group(e, 0, 0, 0) + softmax_group(e, 0, 1, 0): o()
    e.wait_lg(0)
    for t in range(3): kread(e, 1, t)()
    e.clear_hazards(16)
    entry_lg = [set(x) for x in e.lg]
    e.salu(f"s_mov_b32 s{sCNT}, 0")
    e.label("L_loop")
    e.vm = []
    for r in range(6): iteration(e, r, uid=f"l{r}")
    assert [set(x) for x in e.lg[-3:]] == entry_lg[-3:], (e.lg, entry_lg)
    e.salu(f"s_add_u32 s{sCNT}, s{sCNT}, 1"); e.salu(f"s_cmp_lt_u32 s{sCNT}, 5"); e.salu("s_cbranch_scc1 L_loop")
    iteration(e, 0, nxt=False, uid="p30")
    iteration(e, 1, qk=False, nxt=False, dma=False, uid="p31")
    e.clear_hazards(16)
    for a in range(2):
        l = f"v{vL[a]}"
        V("v_mov_b32", "v21", l)
        e.ins(f"v_permlane32_swap_b32 {l}, v21", 'perm', [l, "v21"], [l, "v21"])
        V("v_add_f32", l, l, "v21")
        e.trans("v_rcp_f32", f"v{vAL[a]}", l)
    V("v_lshlrev_b32", "v22", 4, "v1")
    e.salu(f"s_mul_i32 s38, s{sW}, {2 * 12288}")
    n = 0
    for a in range(2):
        for T in range(6):
            for u in range(2):
                tb = 64 + (n % 8) * 12; n += 1
                for i in range(8): e.ins(f"v_accvgpr_read_b32 v{tb+i}, a{Oreg(T,a)+8*u+i}", 'valu', [f"a{Oreg(T,a)+8*u+i}"], [f"v{tb+i}"])
                for i in range(8): V("v_mul_f32", f"v{tb+i}", f"v{tb+i}", f"v{vAL[a]}")
                for i in range(4): V("v_cvt_pk_bf16_f32", f"v{tb+8+i}", f"v{tb+2*i}", f"v{tb+2*i+1}")
                fi = a * 12 + 2 * T + u
                e.salu(f"s_add_u32 s39, s38, {(fi // 4) * 4096}")
                e.bstore(('v', tb + 8), 22, SO, 39, (fi % 4) * 1024)
    e.label("L_k1_end")
    e.raw("  s_endpgm")
    for p in range(2):
        e.label(f"L_rare1_{p}"); e.clear_hazards(16)
        rare1(e, p, False)
        e.salu(f"s_mov_b32 s{sFLAG}, 1")
        e.clear_hazards(4)
        e.raw("  s_setpc_b64 s[36:37]")
    e.label("L_rare2"); e.clear_hazards(16)
    for T in range(6):
        for a in range(2):
            for i in range(16):
                r_ = Oreg(T, a) + i; tv = f"v{21 + (i % 4)}"
                e.ins(f"v_accvgpr_read_b32 {tv}, a{r_}", 'valu', [f"a{r_}"], [tv])
                V("v_mul_f32", tv, tv, f"v{vAL[a]}")
                e.ins(f"v_accvgpr_write_b32 a{r_}, {tv}", 'valu', [tv], [f"a{r_}"])
    e.salu(f"s_mov_b32 s{sFLAG}, 0")
    e.clear_hazards(4)
    e.raw("  s_setpc_b64 s[36:37]")
```

```python
from emit import *
from k1 import srd, add64
PART = 25165824
def gen_k2(e, PSC=''):
    V = e.valu
    SO, SWO, SP = 4, 8, 12
    sW, sWQ, sWK, sQT, sNT, sKS, sOB, sKB, sLB = 24, 25, 26, 27, 28, 29, 30, 31, 32
    STG = 20480
    e.raw(".p2align 8"); e.raw(".type oproj_kernel,@function"); e.label("oproj_kernel")
    e.salu("s_cmp_ge_u32 s2, 256"); e.salu("s_cbranch_scc1 L_k2_end")
    e.salu("s_load_dwordx2 s[40:41], s[0:1], 32"); e.salu("s_load_dwordx2 s[42:43], s[0:1], 56")
    V("v_and_b32", "v1", 63, "v0"); V("v_lshrrev_b32", "v2", 6, "v0")
    e.ins(f"v_readfirstlane_b32 s{sW}, v2", 'rfl', ["v2"], [f"s{sW}"])
    e.salu("s_and_b32 s36, s2, 7"); e.salu("s_lshr_b32 s37, s2, 3")
    e.salu(f"s_and_b32 s{sKS}, s36, 3"); e.salu("s_lshr_b32 s38, s36, 2"); e.salu("s_lshl_b32 s38, s38, 3")
    e.salu("s_lshr_b32 s39, s37, 2"); e.salu(f"s_add_u32 s{sQT}, s38, s39"); e.salu(f"s_and_b32 s{sNT}, s37, 3")
    e.salu(f"s_and_b32 s{sWQ}, s{sW}, 1", rd=[f"s{sW}"]); e.salu(f"s_lshr_b32 s{sWK}, s{sW}, 1")
    e.salu(f"s_lshl_b32 s36, s{sKS}, 3"); e.salu(f"s_lshl_b32 s37, s{sWK}, 2"); e.salu("s_add_u32 s36, s36, s37")
    e.salu(f"s_mul_i32 s{sKB}, s36, {192 * 1280}")
    e.salu(f"s_lshr_b32 s37, s{sQT}, 1"); e.salu("s_lshl_b32 s37, s37, 5"); e.salu("s_add_u32 s37, s37, s36"); e.salu("s_lshl_b32 s37, s37, 3")
    e.salu(f"s_and_b32 s38, s{sQT}, 1"); e.salu("s_lshl_b32 s38, s38, 2"); e.salu("s_add_u32 s37, s37, s38")
    e.salu(f"s_lshl_b32 s38, s{sWQ}, 1"); e.salu("s_add_u32 s37, s37, s38"); e.salu(f"s_mul_i32 s{sOB}, s37, 12288")
    e.salu(f"s_mul_i32 s{sLB}, s{sWK}, {STG}")
    e.raw("  s_waitcnt lgkmcnt(0)")
    e.salu(f"s_mul_i32 s36, s{sNT}, 320"); add64(e, 40, 41, 36); srd(e, SWO, 40, 41, 0); e.salu(f"s_sub_u32 s{SWO+2}, 7864320, s36")
    srd(e, SO, 42, 43, PART)
    e.salu(f"s_mov_b32 s36, {PART}"); add64(e, 42, 43, 36); srd(e, SP, 42, 43, 4 * 2048 * 640 * 4)
    vS = list(range(2, 12)); vO = [12, 13]; vA = 14; vT = 15
    for jj in range(10):
        V("v_mov_b32", "v64", f"s{sWQ}"); V("v_mul_u32_u24", "v64", 640, "v64"); V("v_add_u32", "v64", "v64", "v1"); V("v_add_u32", "v64", 64 * jj, "v64")
        V("v_mul_u32_u24", "v65", 3277, "v64"); V("v_lshrrev_b32", "v65", 16, "v65")
        V("v_mul_u32_u24", "v66", 20, "v65"); V("v_sub_u32", "v66", "v64", "v66")
        V("v_mul_u32_u24", "v65", 1280, "v65"); V("v_lshlrev_b32", "v66", 4, "v66"); V("v_add_u32", "v65", "v65", "v66")
        V("v_subrev_u32", f"v{vS[jj]}", (jj & 3) * 1024, "v65")
    V("v_lshlrev_b32", f"v{vO[0]}", 4, "v1"); V("v_add_u32", f"v{vO[1]}", 12288, f"v{vO[0]}")
    def dma_w(cc):
        st = cc % 4
        e.salu(f"s_add_u32 s38, s{sKB}, {cc * 64 * 1280}")
        e.salu(f"s_mul_i32 s39, s{sWQ}, 10240"); e.salu(f"s_add_u32 s39, s39, s{sLB}")
        for jj in range(10):
            if jj % 4 == 0: e.m0(f"s_add_u32 m0, s39, {st * 2 * STG + jj * 1024}")
            e.dma(vS[jj], SWO, 38, (jj & 3) * 1024, f"w{cc}")
    def oset(cc): return 64 + (cc % 3) * 32
    def load_o(cc):
        ops = []
        def so(): e.salu(f"s_add_u32 s37, s{sOB}, {(cc // 3) * 98304 + (cc % 3) * 4096}")
        ops.append(so)
        for t in range(4):
            for a in range(2):
                ops.append(lambda t=t, a=a: e.bload(('v', oset(cc) + (t * 2 + a) * 4), vO[a], SO, 37, t * 1024, f"o{cc}"))
        return ops
    dma_w(0)
    for o in load_o(0): o()
    dma_w(1)
    for o in load_o(1): o()
    dma_w(2)
    V("v_bfe_u32", "v16", "v1", 4, 1); V("v_lshrrev_b32", "v17", 5, "v1"); V("v_bfe_u32", "v18", "v1", 2, 2); V("v_and_b32", "v19", 3, "v1")
    V("v_lshlrev_b32", "v17", 2, "v17"); V("v_add_u32", "v17", "v17", "v18"); V("v_mul_u32_u24", "v17", 320, "v17")
    V("v_lshlrev_b32", "v16", 4, "v16"); V("v_add_u32", "v17", "v17", "v16")
    V("v_and_b32", "v16", 1, "v19"); V("v_lshlrev_b32", "v16", 5, "v16"); V("v_add_u32", "v17", "v17", "v16")
    V("v_lshrrev_b32", "v16", 1, "v19"); V("v_lshlrev_b32", "v16", 3, "v16"); V("v_add_u32", "v17", "v17", "v16")
    V("v_add_u32", f"v{vA}", f"s{sLB}", "v17")
    V("v_add_u32", f"v{vT}", 2 * 2 * STG, f"v{vA}")
    WR = 160; NW = 8; PF = 5
    def wread(cc, f, half):
        t, N5 = divmod(f, 5); st = cc % 4; gf = cc * 20 + f
        va = vA if st < 2 else vT
        off = (st % 2) * 2 * STG + (16 * t + 8 * half) * 320 + N5 * 64
        return lambda: e.ds_tr(('a', WR + 4 * (gf % NW) + 2 * half), va, off)
    e.wait_vm_tag("w0"); e.barrier()
    for f in range(PF): wread(0, f, 0)(); wread(0, f, 1)()
    for cc in range(12):
        e.comment(f"chunk {cc}")
        e.wait_vm_tag(f"w{cc+1}"); e.barrier()
        mf = []; fill = {}
        add = lambda g, f: fill.setdefault(g, []).append(f)
        for f in range(20):
            t, N5 = divmod(f, 5); gf = cc * 20 + f
            for a in range(2):
                mf.append(lambda t=t, N5=N5, a=a, gf=gf: e.mfma(('a', (a * 5 + N5) * 16), ('a', WR + 4 * (gf % NW)), ('v', oset(cc) + (t * 2 + a) * 4), 0 if (cc == 0 and t == 0) else None))
            nf = f + PF
            ncc, nf2 = (cc, nf) if nf < 20 else (cc + 1, nf - 20)
            if ncc < 12:
                add(2 * f, wread(ncc, nf2, 0)); add(2 * f + 1, wread(ncc, nf2, 1))
        if cc + 2 < 12:
            for k, o in enumerate(load_o(cc + 2)): add(1 + 2 * k, o)
        if cc + 3 < 12: add(20, lambda: dma_w(cc + 3))
        weave(e, mf, fill)
    e.clear_hazards(16)
    e.wait_lg(0); e.barrier()
    V("v_lshlrev_b32", "v16", 4, "v1")
    e.salu(f"s_mul_i32 s36, s{sW}, {STG}"); V("v_add_u32", "v17", "s36", "v16")
    e.salu(f"s_xor_b32 s36, s{sW}, 2"); e.salu(f"s_mul_i32 s36, s36, {STG}"); V("v_add_u32", "v18", "s36", "v16")
    e.salu(f"s_lshl_b32 s36, s{sKS}, 6"); e.salu(f"s_lshl_b32 s37, s{sQT}, 2"); e.salu("s_add_u32 s36, s36, s37")
    e.salu(f"s_lshl_b32 s37, s{sWQ}, 1"); e.salu("s_add_u32 s36, s36, s37"); e.salu(f"s_add_u32 s36, s36, s{sWK}")
    e.salu("s_mul_i32 s36, s36, 20"); e.salu(f"s_mul_i32 s37, s{sNT}, 5"); e.salu("s_add_u32 s36, s36, s37"); e.salu("s_lshl_b32 s38, s36, 12")
    e.salu(f"s_cmp_eq_u32 s{sWK}, 0"); e.salu("s_cbranch_scc1 L_k2_wk0")
    st0 = e.state()
    for wk in (1, 0):
        if wk == 0:
            e.label("L_k2_wk0"); e.set_state(st0)
        snd = 1 - wk
        for N5 in range(5):
            for q in range(4):
                e.ds_write128(17, ('a', (snd * 5 + N5) * 16 + 4 * q), (N5 * 4 + q) * 1024)
        e.wait_lg(0); e.barrier()
        for N5 in range(5):
            for q in range(4):
                e.ds_b128(('v', 64 + (N5 * 4 + q) * 4), 18, (N5 * 4 + q) * 1024)
        for N5 in range(5):
            e.salu(f"s_add_u32 s39, s38, {N5 * 4096}")
            for q in range(4):
                tb = 64 + (N5 * 4 + q) * 4
                for i in range(4):
                    ar = (wk * 5 + N5) * 16 + 4 * q + i
                    e.ins(f"v_accvgpr_read_b32 v{20+i}, a{ar}", 'valu', [f"a{ar}"], [f"v{20+i}"])
                for i in range(4): V("v_add_f32", f"v{tb+i}", f"v{tb+i}", f"v{20+i}")
                e.bstore(('v', tb), 16, SP, 39, q * 1024, flags=PSC)
        if wk == 1: e.raw("  s_endpgm")
    e.label("L_k2_end")
    e.raw("  s_endpgm")

def gen_k3(e):
    V = e.valu
    SP, SOUT = 4, 8
    e.raw(".p2align 8"); e.raw(".type reduce_kernel,@function"); e.label("reduce_kernel")
    e.salu("s_cmp_ge_u32 s2, 320"); e.salu("s_cbranch_scc1 L_k3_end")
    e.salu("s_load_dwordx2 s[40:41], s[0:1], 40"); e.salu("s_load_dwordx2 s[42:43], s[0:1], 56")
    V("v_and_b32", "v1", 63, "v0"); V("v_lshrrev_b32", "v2", 6, "v0")
    e.ins("v_readfirstlane_b32 s24, v2", 'rfl', ["v2"], ["s24"])
    e.salu("s_lshl_b32 s25, s2, 2"); e.salu("s_nop 2"); e.salu("s_add_u32 s25, s25, s24", rd=["s24"])
    e.salu("s_mul_hi_u32 s26, s25, 0xccccccd"); e.salu("s_mul_i32 s27, s26, 20"); e.salu("s_sub_u32 s27, s25, s27")
    e.raw("  s_waitcnt lgkmcnt(0)")
    srd(e, SOUT, 40, 41, 2048 * 640 * 2)
    e.salu(f"s_mov_b32 s36, {PART}"); add64(e, 42, 43, 36); srd(e, SP, 42, 43, 4 * 2048 * 640 * 4)
    V("v_lshlrev_b32", "v2", 4, "v1")
    e.salu("s_lshl_b32 s28, s25, 12")
    for ks in range(4):
        e.salu(f"s_add_u32 s29, s28, {ks * 64 * 20 * 4096}")
        for q in range(4): e.bload(('v', 16 + (ks * 4 + q) * 4), 2, SP, 29, q * 1024)
    V("v_and_b32", "v3", 31, "v1"); V("v_mul_u32_u24", "v3", 1280, "v3"); V("v_lshrrev_b32", "v4", 5, "v1"); V("v_lshlrev_b32", "v4", 5, "v4"); V("v_add_u32", "v3", "v3", "v4")
    e.salu("s_mul_i32 s30, s26, 40960"); e.salu("s_lshl_b32 s31, s27, 6"); e.salu("s_add_u32 s30, s30, s31")
    for i in range(16):
        V("v_add_f32", f"v{16+i}", f"v{16+i}", f"v{32+i}"); V("v_add_f32", f"v{48+i}", f"v{48+i}", f"v{64+i}")
    for i in range(16): V("v_add_f32", f"v{16+i}", f"v{16+i}", f"v{48+i}")
    for i in range(8): V("v_cvt_pk_bf16_f32", f"v{8+i}", f"v{16+2*i}", f"v{17+2*i}")
    e.bstore(('v', 8), 3, SOUT, 30, 0); e.bstore(('v', 12), 3, SOUT, 30, 16)
    e.label("L_k3_end")
    e.raw("  s_endpgm")
```

```python
import sys
from emit import *
import k1, k2
HDR = open('standalone__mha_block_cached__near_ridge.s.ref').read().split('; Override')[0]
def desc(name, vg, sg, acc):
    return f""".p2align 6
.amdhsa_kernel {name}
  .amdhsa_next_free_vgpr {vg}
  .amdhsa_next_free_sgpr {sg}
  .amdhsa_accum_offset {acc}
  .amdhsa_group_segment_fixed_size 0
  .amdhsa_kernarg_size 64
  .amdhsa_user_sgpr_count 2
  .amdhsa_user_sgpr_kernarg_segment_ptr 1
  .amdhsa_system_sgpr_workgroup_id_x 1
.end_amdhsa_kernel
"""
def build(out):
    e = E(); k1.gen_k1(e)
    e2 = E(); k2.gen_k2(e2)
    e3 = E(); k2.gen_k3(e3)
    s = HDR
    s += "; @launch kernel=attn_kernel grid=(256,1,1) block=(256,1,1) lds=163840\n"
    s += "; @launch kernel=oproj_kernel grid=(256,1,1) block=(256,1,1) lds=163840\n"
    s += "; @launch kernel=reduce_kernel grid=(320,1,1) block=(256,1,1) lds=0\n"
    s += '.amdgcn_target "amdgcn-amd-amdhsa--gfx950"\n.text\n'
    s += ".globl attn_kernel\n.globl oproj_kernel\n.globl reduce_kernel\n"
    s += "\n".join(e.lines) + "\n" + "\n".join(e2.lines) + "\n" + "\n".join(e3.lines) + "\n"
    s += '.section .rodata,"a"\n'
    s += desc("attn_kernel", 512, 96 if STAMP else 64, 256) + desc("oproj_kernel", 512, 96 if STAMP else 64, 256) + desc("reduce_kernel", 96, 48, 96)
    open(out, 'w').write(s)
    print("lines", s.count("\n"), "mfma", e.nmfma, e2.nmfma)
if __name__ == "__main__":
    build(sys.argv[1] if len(sys.argv) > 1 else 'standalone__mha_block_cached__near_ridge.s')
```

```python
def R(p, base, n=1):
    return [f"{p}{base+i}" for i in range(n)]
def rr(p, base, n):
    return f"{p}{base}" if n == 1 else f"{p}[{base}:{base+n-1}]"

class E:
    def __init__(self):
        self.lines = []
        self.hist = []
        self.pos = 0
        self.lg = []
        self.vm = []
        self.nmfma = 0
    def raw(self, t):
        self.lines.append(t)
    def label(self, l):
        self.lines.append(f"{l}:")
    def comment(self, t):
        self.lines.append(f"  ; {t}")
    def _nop(self, n):
        while n > 0:
            k = min(n, 16)
            self.lines.append(f"  s_nop {k-1}")
            self.pos += k
            n -= k
    def state(self):
        return (list(self.hist), self.pos, [set(x) for x in self.lg], [(t, set(d)) for t, d in self.vm])
    def set_state(self, st):
        self.hist = list(st[0]); self.pos = st[1]
        self.lg = [set(x) for x in st[2]]; self.vm = [(t, set(d)) for t, d in st[3]]
    def clear_hazards(self, n=16):
        self._nop(n); self.hist = []
    def wait_lg(self, n):
        n = min(n, 15)
        if len(self.lg) > n:
            self.lines.append(f"  s_waitcnt lgkmcnt({n})"); self.pos += 1
            self.lg = self.lg[len(self.lg)-n:] if n > 0 else []
    def wait_lg_regs(self, regs):
        regs = set(regs); need = None
        for i, d in enumerate(self.lg):
            if d & regs: need = i
        if need is not None: self.wait_lg(len(self.lg) - 1 - need)
    def wait_vm(self, n):
        assert n <= 63
        if len(self.vm) > n:
            self.lines.append(f"  s_waitcnt vmcnt({n})"); self.pos += 1
            self.vm = self.vm[len(self.vm)-n:] if n > 0 else []
    def wait_vm_raw(self, n):
        self.lines.append(f"  s_waitcnt vmcnt({n})"); self.pos += 1
        if len(self.vm) > n:
            self.vm = self.vm[len(self.vm)-n:] if n > 0 else []
    def wait_vm_tag(self, tag):
        idx = [i for i, (t, d) in enumerate(self.vm) if t == tag]
        if idx:
            self.wait_vm(len(self.vm) - 1 - idx[-1])
    def ins(self, text, kind, rd=(), wr=(), cread=(), passes=8):
        rd = set(rd); wr = set(wr); cread = set(cread)
        touched = rd | wr
        need = None
        for i, d in enumerate(self.lg):
            if d & touched: need = i
        if need is not None: self.wait_lg(len(self.lg) - 1 - need)
        need = None
        for i, (t, d) in enumerate(self.vm):
            if d & touched: need = i
        if need is not None: self.wait_vm(len(self.vm) - 1 - need)
        req = 0
        for (p, k, prd, pwr, pc, pps) in self.hist:
            dist = self.pos - p - 1
            n = 0
            isv = kind in ('valu', 'trans', 'perm', 'rfl')
            if k == 'mfma':
                lat = {8: 12, 4: 8}[pps]
                if kind == 'mfma':
                    if pwr & (rd - cread): n = max(n, lat)
                    if pwr & cread:
                        if pwr != cread: n = max(n, lat - 2)
                elif isv or kind in ('ds', 'vmem'):
                    if pwr & touched: n = max(n, lat)
                    if isv and (pc & wr): n = max(n, {8: 7, 4: 3}[pps])
                    if kind in ('ds', 'vmem') and (pc & wr): n = max(n, {8: 7, 4: 3}[pps])
            elif k in ('valu', 'trans', 'perm'):
                if kind == 'mfma' and (pwr & rd): n = max(n, 2)
                if kind == 'perm' and (pwr & touched): n = max(n, 2)
                if kind == 'rfl' and (pwr & rd): n = max(n, 1)
                if k == 'trans' and kind != 'trans' and (pwr & rd): n = max(n, 1)
                sg = {x for x in pwr if x[0] == 's' or x == 'vcc'}
                if sg & rd:
                    if isv: n = max(n, 2)
                    if kind in ('vmem',): n = max(n, 5)
            elif k == 'rfl':
                if pwr & rd:
                    if isv: n = max(n, 2)
                    elif kind == 'vmem': n = max(n, 5)
                    else: n = max(n, 3)
            elif k == 'vmemst':
                if isv and (prd & wr): n = max(n, 2)
            elif k == 'm0w':
                if kind == 'vmem' and 'm0' in rd: n = max(n, 1)
            req = max(req, n - dist)
        if req > 0: self._nop(req)
        self.lines.append("  " + text)
        hk = kind
        if kind == 'vmem' and text.startswith(('buffer_store', 'global_store')): hk = 'vmemst'
        if kind == 'salu' and 'm0' in wr: hk = 'm0w'
        self.hist.append((self.pos, hk, rd, wr, cread, passes))
        self.pos += 1
        if len(self.hist) > 24: self.hist = self.hist[-24:]
        if kind == 'mfma': self.nmfma += 1
    def mfma(self, d, a, b, c=None):
        D = R(d[0], d[1], 16); A = R(a[0], a[1], 4); B = R(b[0], b[1], 4)
        if c is None: c = d
        if c == 0:
            self.ins(f"v_mfma_f32_32x32x16_bf16 {rr(d[0],d[1],16)}, {rr(a[0],a[1],4)}, {rr(b[0],b[1],4)}, 0", 'mfma', A + B, D)
        else:
            C = R(c[0], c[1], 16)
            self.ins(f"v_mfma_f32_32x32x16_bf16 {rr(d[0],d[1],16)}, {rr(a[0],a[1],4)}, {rr(b[0],b[1],4)}, {rr(c[0],c[1],16)}", 'mfma', A + B + C, D, C)
    def ds_read(self, op, d, n, addr, off):
        assert 0 <= off < 65536, off
        D = R(d[0], d[1], n)
        self.ins(f"{op} {rr(d[0],d[1],n)}, v{addr} offset:{off}", 'ds', [f"v{addr}"], D)
        self.lg.append(set(D))
    def ds_b128(self, d, addr, off): self.ds_read("ds_read_b128", d, 4, addr, off)
    def ds_tr(self, d, addr, off): self.ds_read("ds_read_b64_tr_b16", d, 2, addr, off)
    def ds_write128(self, addr, s, off):
        assert 0 <= off < 65536
        self.ins(f"ds_write_b128 v{addr}, {rr(s[0],s[1],4)} offset:{off}", 'ds', [f"v{addr}"] + R(s[0], s[1], 4), [])
        self.lg.append(set())
    def dma(self, voff, srd, soff, imm, tag, nt=False):
        assert 0 <= imm < 4096
        so = f"s{soff}" if isinstance(soff, int) else soff
        self.ins(f"buffer_load_dwordx4 v{voff}, s[{srd}:{srd+3}], {so} offen offset:{imm}{' nt' if nt else ''} lds", 'vmem', [f"v{voff}", 'm0', so], [])
        self.vm.append((tag, set()))
    def bload(self, d, voff, srd, soff, imm, tag='ld', flags=''):
        so = f"s{soff}" if isinstance(soff, int) else soff
        D = R(d[0], d[1], 4)
        self.ins(f"buffer_load_dwordx4 {rr(d[0],d[1],4)}, v{voff}, s[{srd}:{srd+3}], {so} offen offset:{imm}{flags}", 'vmem', [f"v{voff}", so], D)
        self.vm.append((tag, set(D)))
    def bstore(self, s, voff, srd, soff, imm, n=4, flags=''):
        so = f"s{soff}" if isinstance(soff, int) else soff
        sfx = {4: 'x4', 2: 'x2', 1: ''}[n]
        S = R(s[0], s[1], n)
        self.ins(f"buffer_store_dword{sfx} {rr(s[0],s[1],n)}, v{voff}, s[{srd}:{srd+3}], {so} offen offset:{imm}{flags}", 'vmem', [f"v{voff}", so] + S, [])
        self.vm.append(('st', set()))
    def salu(self, text, rd=(), wr=()): self.ins(text, 'salu', rd, wr)
    def m0(self, text): self.ins(text, 'salu', [], ['m0'])
    def valu(self, op, d, *srcs, kind='valu'):
        rd = [s.lstrip('-') for s in srcs if isinstance(s, str) and s.lstrip('-')[:1] in 'vas' and s.lstrip('-')[1:].isdigit()]
        rd += [s for s in srcs if s == 'vcc']
        self.ins(f"{op} {d}, " + ", ".join(str(s) for s in srcs), kind, rd, [d])
    def trans(self, op, d, s): self.valu(op, d, s, kind='trans')
    def barrier(self): self.ins("s_barrier", 'salu')

def weave(e, mfmas, fillers):
    for g, m in enumerate(mfmas):
        m()
        for f in fillers.get(g, []): f()

def spread(fill, ops, g0, g1, cost=None):
    n = g1 - g0 + 1
    if cost is None: cost = [1.0] * len(ops)
    tot = sum(cost); acc = 0.0
    for o, c in zip(ops, cost):
        g = g0 + min(n - 1, int((acc + 0.5 * c) / tot * n))
        fill.setdefault(g, []).append(o)
        acc += c

import os
OPT = set(os.environ.get('OPT', '').split(','))
STAMP = 'stamp' in OPT
def stamp(e, i):
    if not STAMP: return
    b = 52 + 4 * i
    e.raw(f"  s_memtime s[{b}:{b+1}]"); e.raw(f"  s_memrealtime s[{b+2}:{b+3}]"); e.raw("  s_waitcnt lgkmcnt(0)")
    e.lg = []
def stamp_flush(e, kidx, n, sw):
    if not STAMP: return
    e.raw("  s_waitcnt vmcnt(0) lgkmcnt(0)")
    stamp(e, n)
    e.raw("  s_load_dwordx2 s[40:41], s[0:1], 56"); e.raw("  s_waitcnt lgkmcnt(0)")
    e.raw("  s_mov_b32 s44, s40"); e.raw("  s_and_b32 s45, s41, 0xffff"); e.raw("  s_mov_b32 s46, 0x10000000"); e.raw("  s_mov_b32 s47, 0x20000")
    e.raw(f"  s_lshl_b32 s36, s2, 2"); e.raw(f"  s_add_u32 s36, s36, s{sw}"); e.raw(f"  s_lshl_b32 s36, s36, 8")
    e.raw(f"  s_add_u32 s36, s36, {(64 << 20) + kidx * (1 << 20)}")
    e.raw("  v_mov_b32 v3, 0")
    for i in range(4 * (n + 1)):
        e.raw(f"  v_mov_b32 v2, s{52+i}"); e.raw("  s_nop 4")
        e.raw(f"  buffer_store_dword v2, v3, s[44:47], s36 offen offset:{4*i}"); e.raw("  s_waitcnt vmcnt(0)")
```

```python
from emit import *
import struct
def f32bits(x): return struct.unpack('<I', struct.pack('<f', x))[0]

KR, VR, SPARE = 0, 73728, 147456
TILE = 12288
SX, SWQ, SK, SV, SO = 4, 8, 12, 16, 20
sW, sB, sH, sBH, sW3, sXB, sSRC, sCNT, sFLAG = 24, 25, 26, 27, 28, 29, 30, 31, 32
sC = 34
vK = [2, 3, 4, 5]; vVlo = [6, 7]; vVhi = [8, 9]; vKs = [10, 11, 12]; vVs = [13, 14, 15]
vL = [16, 17]; vTM = 18; vAL = [19, 20]
NEGM = 32; SB = 64; QF = 160
vX = [16, 17, 18, 19]; vWa = [20, 21]; vXs = list(range(22, 30)); vWs = [2, 3, 4]
KF = 192; VF = 208
XS1 = 192; WF = 224
THR = 8.0
STF = ' sc1' if 'sc1' in OPT else (' nt' if 'stnt' in OPT else (' sc0 sc1' if 'sc01' in OPT else ''))
NT_KV = True

def Sreg(p, a): return SB + p * 32 + a * 16
def Oreg(T, a): return (T * 2 + a) * 16
def Qfrag(a, t): return QF + ((t >> 1) * 2 + a) * 8 + 4 * (t & 1)

def srd(e, s, lo, hi, nrec):
    e.salu(f"s_mov_b32 s{s}, s{lo}"); e.salu(f"s_and_b32 s{s+1}, s{hi}, 0xffff")
    e.salu(f"s_mov_b32 s{s+2}, {nrec}"); e.salu(f"s_mov_b32 s{s+3}, 0x20000")

def add64(e, lo, hi, off):
    e.salu(f"s_add_u32 s{lo}, s{lo}, s{off}"); e.salu(f"s_addc_u32 s{hi}, s{hi}, 0")

def tile_src(e, dst, jj, mode, rowstride, extra, t0=64):
    V = e.valu
    L, key, p, c, t = (f"v{t0+i}" for i in range(5))
    V("v_mov_b32", L, f"s{sW}"); V("v_mul_u32_u24", L, 192, L); V("v_add_u32", L, L, "v1")
    V("v_add_u32", L, 64 * jj, L)
    V("v_mul_u32_u24", key, 2731, L); V("v_lshrrev_b32", key, 16, key)
    V("v_mul_u32_u24", t, 24, key); V("v_sub_u32", p, L, t)
    if mode == 'K':
        V("v_lshrrev_b32", t, 1, key); V("v_and_b32", t, 7, t); V("v_xor_b32", c, p, t)
    else:
        V("v_lshlrev_b32", t, 1, key); V("v_and_b32", t, 4, t); V("v_xor_b32", c, p, t)
    e.salu(f"s_mov_b32 s36, {rowstride}")
    V("v_mul_lo_u32", t, key, "s36"); V("v_lshlrev_b32", c, 4, c); V("v_add_u32", t, t, c)
    V("v_add_u32", f"v{dst}", (extra - 1024 * jj) & 0xffffffff, t)

def tr_addr(e, dE, dO, base, rowmul_hh, perm, t0=64):
    V = e.valu
    g1, hh, r, c, s, t, u = (f"v{t0+i}" for i in range(7))
    V("v_bfe_u32", g1, "v1", 4, 1); V("v_lshrrev_b32", hh, 5, "v1")
    V("v_bfe_u32", r, "v1", 2, 2); V("v_and_b32", c, 3, "v1")
    V("v_lshrrev_b32", s, 1, r)
    V("v_mul_u32_u24", t, rowmul_hh, hh); V("v_add_u32", t, t, r); V("v_mul_u32_u24", t, 384, t)
    V("v_lshlrev_b32", u, 5, g1); V("v_add_u32", t, t, u)
    if perm == 'id':
        V("v_lshlrev_b32", u, 3, c); V("v_add_u32", t, t, u)
    else:
        V("v_and_b32", u, 1, c); V("v_lshlrev_b32", u, 4, u); V("v_add_u32", t, t, u)
        V("v_lshrrev_b32", u, 1, c); V("v_lshlrev_b32", u, 3, u); V("v_add_u32", t, t, u)
    V("v_add_u32", t, base, t)
    V("v_lshlrev_b32", u, 6, s)
    V("v_add_u32", f"v{dE}", t, u)
    V("v_sub_u32", f"v{dO}", t, u); V("v_add_u32", f"v{dO}", 64, f"v{dO}")

def softmax_group(e, p, a, u):
    b = Sreg(p, a) + 8 * u; l = f"v{vL[a]}"
    ex = lambda i: (lambda: e.trans("v_exp_f32", f"v{b+i}", f"v{b+i}"), 2.0)
    ad = lambda i: (lambda: e.valu("v_add_f32", l, l, f"v{b+i}"), 1.0)
    cv = lambda j: (lambda: e.valu("v_cvt_pk_bf16_f32", f"v{b+j}", f"v{b+2*j}", f"v{b+2*j+1}"), 1.0)
    return [ex(0), ex(1), ex(2), ad(0), ad(1), cv(0), ex(3), ad(2), ex(4), ad(3), cv(1), ex(5), ad(4), ex(6), ad(5), cv(2), ex(7), ad(6), ad(7), cv(3)]

def fix_group(g):
    return g

def max_ops(e, p):
    regs = [f"v{Sreg(p,0)+i}" for i in range(32)]
    ops = []; tm = f"v{vTM}"
    ops.append((lambda: e.valu("v_max3_f32", tm, regs[0], regs[1], regs[2]), 1.0))
    i = 3
    while i < 32:
        if i + 1 < 32:
            ops.append((lambda i=i: e.valu("v_max3_f32", tm, tm, regs[i], regs[i+1]), 1.0)); i += 2
        else:
            ops.append((lambda i=i: e.valu("v_max_f32", tm, tm, regs[i]), 1.0)); i += 1
    return ops

def rare1(e, p, first):
    V = e.valu
    for a in range(2):
        b = Sreg(p, a); tm, t2, d = "v21", "v22", "v23"
        V("v_max3_f32", tm, f"v{b}", f"v{b+1}", f"v{b+2}")
        for i in range(3, 15, 2): V("v_max3_f32", tm, tm, f"v{b+i}", f"v{b+i+1}")
        V("v_max_f32", tm, tm, f"v{b+15}")
        V("v_mov_b32", t2, tm)
        e.ins(f"v_permlane32_swap_b32 {tm}, {t2}", 'perm', [tm, t2], [tm, t2])
        V("v_max_f32", d, tm, t2)
        if not first: V("v_max_f32", d, 0, d)
        for i in range(16): V("v_sub_f32", f"v{b+i}", f"v{b+i}", d)
        if first:
            for i in range(16): V("v_sub_f32", f"v{NEGM+16*a+i}", 0, d)
            V("v_mov_b32", f"v{vL[a]}", 0)
        else:
            for i in range(16): V("v_sub_f32", f"v{NEGM+16*a+i}", f"v{NEGM+16*a+i}", d)
            e.ins(f"v_exp_f32 v{vAL[a]}, -{d}", 'trans', [d], [f"v{vAL[a]}"])
            V("v_mul_f32", f"v{vL[a]}", f"v{vL[a]}", f"v{vAL[a]}")

def kread(e, slot, t):
    return lambda: e.ds_b128(('a', KF + 4 * (t % 4)), vK[t & 3], slot * TILE + (t >> 2) * 128)
def vread(e, slot, f, half):
    u, T = divmod(f, 6)
    va = (vVlo if slot < 3 else vVhi)[T & 1]
    off = (slot % 3) * TILE + (16 * u + 8 * half) * 384 + (T >> 1) * 128
    return lambda: e.ds_tr(('a', VF + 4 * (f % 4) + 2 * half), va, off)

def iteration(e, r, qk=True, nxt=True, dma=True, uid=""):
    p = r & 1; pn = 1 - p
    e.wait_vm_raw(21); e.barrier()
    mf = []; fill = {}
    for t in range(12):
        for a in range(2):
            if qk:
                mf.append(lambda t=t, a=a: e.mfma(('v', Sreg(pn, a)), ('a', KF + 4 * (t % 4)), ('v', Qfrag(a, t)), ('v', NEGM + 16 * a) if t == 0 else None))
            else:
                mf.append(lambda: None)
    for f in range(12):
        u, T = divmod(f, 6)
        for a in range(2):
            mf.append(lambda f=f, u=u, T=T, a=a: e.mfma(('a', Oreg(T, a)), ('a', VF + 4 * (f % 4)), ('v', Sreg(p, a) + 8 * u)))
    add = lambda g, f: fill.setdefault(g, []).append(f)
    if qk:
        for t in range(3, 12): add(2 * (t - 3), kread(e, (r + 1) % 6, t))
    for f in range(12):
        add(24 + 2 * (f - 3), vread(e, r % 6, f, 0)); add(24 + 2 * (f - 3) + 1, vread(e, r % 6, f, 1))
    if nxt:
        for t in range(3): add(42 + 2 * t, kread(e, (r + 2) % 6, t))
    if dma:
        nt = NT_KV
        add(1, lambda: e.m0(f"s_add_u32 m0, s{sW3}, {KR + r * TILE}"))
        for jj in range(3): add(1 + 2 * jj, lambda jj=jj: e.dma(vKs[jj], SK, sSRC, 1024 * jj, 'kv', nt))
        add(7, lambda: e.m0(f"s_add_u32 m0, s{sW3}, {VR + ((r + 5) % 6) * TILE}"))
        for jj in range(3): add(7 + 2 * jj, lambda jj=jj: e.dma(vVs[jj], SV, sSRC, 1024 * jj, 'kv', nt))
        add(13, lambda: e.salu(f"s_add_u32 s{sSRC}, s{sSRC}, {TILE}"))
    ops = softmax_group(e, p, 0, 1) + softmax_group(e, p, 1, 1)
    spread(fill, [o for o, c in ops], 0, 23, [c for o, c in ops])
    if qk:
        ops = max_ops(e, pn)
        spread(fill, [o for o, c in ops], 27, 31)
        def check():
            e.ins(f"v_cmp_lt_f32 vcc, 0x{f32bits(THR):08x}, v{vTM}", 'valu', [f"v{vTM}"], ['vcc'])
            e.salu(f"s_cbranch_vccz L_ok1_{uid}")
            e.salu(f"s_call_b64 s[36:37], L_rare1_{pn}")
            e.label(f"L_ok1_{uid}")
        add(31, check)
        ops = softmax_group(e, pn, 0, 0) + softmax_group(e, pn, 1, 0)
        spread(fill, [o for o, c in ops], 32, 47, [c for o, c in ops])
    weave(e, mf, fill)
    if qk:
        e.salu(f"s_cmp_eq_u32 s{sFLAG}, 0")
        e.salu(f"s_cbranch_scc1 L_ok2_{uid}")
        e.salu(f"s_call_b64 s[36:37], L_rare2")
        e.label(f"L_ok2_{uid}")

def gen_k1(e):
    V = e.valu
    e.raw(".p2align 8"); e.raw(".type attn_kernel,@function"); e.label("attn_kernel")
    e.salu("s_cmp_ge_u32 s2, 256"); e.salu("s_cbranch_scc1 L_k1_end")
    stamp(e, 0)
    e.salu("s_load_dwordx8 s[40:47], s[0:1], 0"); e.salu("s_load_dwordx2 s[48:49], s[0:1], 56")
    V("v_and_b32", "v1", 63, "v0"); V("v_lshrrev_b32", "v2", 6, "v0")
    e.ins(f"v_readfirstlane_b32 s{sW}, v2", 'rfl', ["v2"], [f"s{sW}"])
    e.salu("s_and_b32 s36, s2, 7"); e.salu("s_lshr_b32 s37, s2, 3")
    e.salu("s_and_b32 s38, s36, 1"); e.salu("s_lshl_b32 s38, s38, 2"); e.salu("s_and_b32 s39, s37, 3"); e.salu(f"s_add_u32 s{sB}, s38, s39")
    e.salu("s_lshr_b32 s38, s36, 1"); e.salu("s_lshl_b32 s38, s38, 3"); e.salu("s_lshr_b32 s39, s37, 2"); e.salu(f"s_add_u32 s{sH}, s38, s39")
    e.salu(f"s_lshl_b32 s{sBH}, s{sB}, 5"); e.salu(f"s_add_u32 s{sBH}, s{sBH}, s{sH}")
    e.salu(f"s_mul_i32 s{sW3}, s{sW}, 3072", rd=[f"s{sW}"])
    e.salu(f"s_lshl_b32 s36, s{sW}, 13"); e.salu(f"s_add_u32 s37, s36, {SPARE}"); e.salu(f"s_add_u32 s38, s36, {49152 - 16384}")
    e.salu(f"s_cmp_lt_u32 s{sW}, 2"); e.salu(f"s_cselect_b32 s{sXB}, s37, s38")
    cbits = f32bits((192 ** -0.5) * 1.4426950408889634)
    e.salu(f"s_mov_b32 s{sC}, 0x{cbits:08x}"); e.salu(f"s_mov_b32 s{sC+1}, 0x{cbits:08x}")
    e.salu(f"s_mov_b32 s{sFLAG}, 0")
    e.raw("  s_waitcnt lgkmcnt(0)")
    e.salu(f"s_mul_i32 s36, s{sB}, 327680"); add64(e, 40, 41, 36); srd(e, SX, 40, 41, 327680)
    e.salu(f"s_mul_i32 s36, s{sBH}, 393216"); add64(e, 42, 43, 36); srd(e, SK, 42, 43, 393216)
    add64(e, 44, 45, 36); srd(e, SV, 44, 45, 393216)
    e.salu(f"s_mul_i32 s36, s{sH}, 384"); add64(e, 46, 47, 36); srd(e, SWQ, 46, 47, 0)
    e.salu(f"s_sub_u32 s{SWQ+2}, 7864320, s36")
    e.salu(f"s_mul_i32 s36, s{sBH}, 98304"); add64(e, 48, 49, 36); srd(e, SO, 48, 49, 98304)
    for jj in range(3): tile_src(e, vWs[jj], jj, 'V', 12288, 0)
    for j in range(8):
        V("v_lshrrev_b32", "v64", 3, "v1"); V("v_add_u32", "v64", 8 * j, "v64")
        V("v_bfe_u32", "v65", "v64", 1, 3); V("v_and_b32", "v66", 7, "v1"); V("v_xor_b32", "v65", "v65", "v66")
        V("v_mov_b32", "v66", f"s{sW}"); V("v_lshlrev_b32", "v66", 6, "v66"); V("v_add_u32", "v64", "v64", "v66")
        V("v_mul_u32_u24", "v64", 1280, "v64"); V("v_lshlrev_b32", "v65", 4, "v65"); V("v_add_u32", "v64", "v64", "v65")
        V("v_subrev_u32", f"v{vXs[j]}", (j & 3) * 1024, "v64")
    ROT = 'rot1' in OPT
    def nextc(reg, n):
        e.salu(f"s_add_u32 s{reg}, s{reg}, 1"); e.salu(f"s_cmp_eq_u32 s{reg}, {n}"); e.salu(f"s_cselect_b32 s{reg}, 0, s{reg}")
    if ROT:
        e.salu("s_lshr_b32 s50, s2, 3"); e.salu("s_and_b32 s51, s50, 3"); e.salu("s_mul_i32 s51, s51, 3"); e.salu("s_lshr_b32 s50, s50, 2")
        e.salu("s_add_u32 s50, s50, s51"); e.salu("s_sub_u32 s51, s50, 10"); e.salu("s_cmp_ge_u32 s50, 10"); e.salu("s_cselect_b32 s50, s51, s50")
        e.salu("s_lshl_b32 s51, s50, 1")
    def dma_x(c):
        if ROT:
            e.salu("s_lshl_b32 s38, s50, 7"); nextc(50, 10)
        else: e.salu(f"s_mov_b32 s38, {c * 128}")
        for j in range(8):
            if j % 4 == 0: e.m0(f"s_add_u32 m0, s{sXB}, {j * 1024}")
            e.dma(vXs[j], SX, 38, (j & 3) * 1024, f"x{c}")
    def dma_w(hc):
        if ROT:
            e.salu(f"s_mul_i32 s39, s51, {32 * 12288}"); nextc(51, 20)
        else: e.salu(f"s_mov_b32 s39, {hc * 32 * 12288}")
        e.m0(f"s_add_u32 m0, s{sW3}, {VR + (2 + hc % 4) * TILE}")
        for jj in range(3): e.dma(vWs[jj], SWQ, 39, 1024 * jj, f"w{hc}")
    def dma_kv(which, tile, slot):
        e.salu(f"s_mov_b32 s39, {tile * TILE}")
        e.m0(f"s_add_u32 m0, s{sW3}, {(KR if which == 'K' else VR) + slot * TILE}")
        for jj in range(3):
            e.dma((vKs if which == 'K' else vVs)[jj], SK if which == 'K' else SV, 39, 1024 * jj, f"{which}{tile}", NT_KV)
    dma_x(0); dma_w(0); dma_w(1); dma_w(2)
    for jj in range(3): tile_src(e, vKs[jj], jj, 'K', 384, 0)
    for jj in range(3): tile_src(e, vVs[jj], jj, 'V', 384, 0)
    V("v_and_b32", "v64", 31, "v1"); V("v_lshrrev_b32", "v65", 5, "v1"); V("v_bfe_u32", "v66", "v64", 1, 3)
    V("v_xor_b32", "v65", "v65", "v66"); V("v_lshlrev_b32", "v65", 4, "v65"); V("v_lshlrev_b32", "v64", 7, "v64")
    V("v_add_u32", "v64", f"s{sXB}", "v64")
    for t in range(4):
        V("v_xor_b32", "v66", 32 * t, "v65"); V("v_add_u32", f"v{vX[t]}", "v64", "v66")
    tr_addr(e, vWa[0], vWa[1], VR + 2 * TILE, 8, 'q')
    def xset(c): return ('v', 32) if c % 2 == 0 else ('a', XS1)
    def read_x(c):
        ops = []
        for a in range(2):
            for t in range(4):
                ops.append(lambda a=a, t=t: e.ds_b128((xset(c)[0], xset(c)[1] + (a * 4 + t) * 4), vX[t], a * 4096))
        return ops
    def wread(hc, f, half):
        t, T = divmod(f, 6)
        off = (hc % 4) * TILE + (16 * t + 4 * half) * 384 + (T >> 1) * 128
        gf = hc * 12 + f
        return lambda: e.ds_tr(('a', WF + 4 * (gf % 6) + 2 * half), vWa[T & 1], off)
    e.wait_vm_tag("x0")
    for o in read_x(0): o()
    e.wait_lg(0)
    dma_x(1)
    e.wait_vm_tag("w0"); e.barrier()
    PF = 4
    stamp(e, 1)
    for f in range(PF): wread(0, f, 0)(); wread(0, f, 1)()
    zero_a = list(range(192))
    kv_early = {1: ('K', 0), 3: ('K', 1), 5: ('V', 0), 7: ('K', 2), 9: ('K', 3), 11: ('V', 1)}
    for hc in range(20):
        c = hc // 2
        e.wait_vm_tag(f"w{hc+1}"); e.barrier()
        mf = []; fill = {}
        add = lambda g, f: fill.setdefault(g, []).append(f)
        for f in range(12):
            t, T = divmod(f, 6); tt = (hc % 2) * 2 + t; gf = hc * 12 + f
            for a in range(2):
                xs = xset(c)
                mf.append(lambda T=T, a=a, tt=tt, gf=gf, xs=xs: e.mfma(('v', 64 + (T * 2 + a) * 16), ('a', WF + 4 * (gf % 6)), (xs[0], xs[1] + (a * 4 + tt) * 4), 0 if (hc == 0 and tt == 0) else None))
            nf = f + PF
            nhc, nf2 = (hc, nf) if nf < 12 else (hc + 1, nf - 12)
            if nhc < 20:
                add(2 * f + 1, wread(nhc, nf2, 0)); add(2 * f + 1, wread(nhc, nf2, 1))
        if hc + 3 < 20: add(0, lambda: dma_w(hc + 3))
        if hc % 2 == 1 and c + 1 < 10:
            add(2, lambda: e.wait_vm_tag(f"x{c+1}"))
            for k, o in enumerate(read_x(c + 1)): add(2 + k, o)
            if c + 2 < 10:
                add(16, lambda: (e.wait_lg_regs(R(xset(c + 1)[0], xset(c + 1)[1], 32)), dma_x(c + 2)))
        if hc in kv_early:
            wh, tl = kv_early[hc]; add(8, lambda wh=wh, tl=tl: dma_kv(wh, tl, tl))
        if hc == 17: add(4, lambda: dma_kv('V', 2, 2))
        if hc == 18:
            add(2, lambda: dma_kv('K', 4, 4)); add(8, lambda: dma_kv('V', 3, 3)); add(14, lambda: dma_kv('K', 5, 5))
        if hc == 19: add(2, lambda: dma_kv('V', 4, 4))
        for k in range(10):
            if zero_a:
                r_ = zero_a.pop(0); add(2 * k + 2, lambda r_=r_: e.ins(f"v_accvgpr_write_b32 a{r_}, 0", 'valu', [], [f"a{r_}"]))
        weave(e, mf, fill)
    assert not zero_a
    stamp(e, 2)
    for j in range(190, -1, -2):
        e.ins(f"v_pk_mul_f32 v[{64+j}:{65+j}], v[{64+j}:{65+j}], s[{sC}:{sC+1}]", 'valu', [f"v{64+j}", f"v{65+j}"], [f"v{64+j}", f"v{65+j}"])
        V("v_cvt_pk_bf16_f32", f"v{QF + j // 2}", f"v{64+j}", f"v{65+j}")
    V("v_and_b32", "v64", 31, "v1"); V("v_lshrrev_b32", "v65", 5, "v1"); V("v_bfe_u32", "v66", "v64", 1, 3)
    V("v_xor_b32", "v65", "v65", "v66"); V("v_lshlrev_b32", "v65", 4, "v65"); V("v_mul_u32_u24", "v64", 384, "v64")
    for k in range(4):
        V("v_xor_b32", "v66", 32 * k, "v65"); V("v_add_u32", f"v{vK[k]}", "v64", "v66")
    tr_addr(e, vVlo[0], vVlo[1], VR, 4, 'id')
    for k in range(2): V("v_add_u32", f"v{vVhi[k]}", 3 * TILE, f"v{vVlo[k]}")
    for i in range(32): V("v_mov_b32", f"v{NEGM+i}", 0)
    for jj in range(3): V("v_add_u32", f"v{vKs[jj]}", TILE, f"v{vKs[jj]}")
    e.salu(f"s_mov_b32 s{sSRC}, {5 * TILE}")
    e.wait_vm_tag("K1"); e.barrier()
    for t in range(12):
        if t == 0:
            for tt in range(3): kread(e, 0, tt)()
        if t + 3 < 12: kread(e, 0, t + 3)()
        for a in range(2):
            e.mfma(('v', Sreg(0, a)), ('a', KF + 4 * (t % 4)), ('v', Qfrag(a, t)), ('v', NEGM + 16 * a) if t == 0 else None)
    rare1(e, 0, True)
    for o, c in softmax_group(e, 0, 0, 0) + softmax_group(e, 0, 1, 0): o()
    e.wait_lg(0)
    for t in range(3): kread(e, 1, t)()
    e.clear_hazards(16)
    entry_lg = [set(x) for x in e.lg]
    stamp(e, 3)
    e.salu(f"s_mov_b32 s{sCNT}, 0")
    e.label("L_loop")
    e.vm = []
    for r in range(6): iteration(e, r, uid=f"l{r}")
    assert STAMP or [set(x) for x in e.lg[-3:]] == entry_lg[-3:], (e.lg, entry_lg)
    e.salu(f"s_add_u32 s{sCNT}, s{sCNT}, 1"); e.salu(f"s_cmp_lt_u32 s{sCNT}, 5"); e.salu("s_cbranch_scc1 L_loop")
    iteration(e, 0, nxt=False, uid="p30")
    iteration(e, 1, qk=False, nxt=False, dma=False, uid="p31")
    stamp(e, 4)
    e.clear_hazards(16)
    for a in range(2):
        l = f"v{vL[a]}"
        V("v_mov_b32", "v21", l)
        e.ins(f"v_permlane32_swap_b32 {l}, v21", 'perm', [l, "v21"], [l, "v21"])
        V("v_add_f32", l, l, "v21")
        e.trans("v_rcp_f32", f"v{vAL[a]}", l)
    V("v_lshlrev_b32", "v22", 4, "v1")
    e.salu(f"s_mul_i32 s38, s{sW}, {2 * 12288}")
    n = 0
    for a in range(2):
        for T in range(6):
            for u in range(2):
                tb = 64 + (n % 8) * 12; n += 1
                for i in range(8): e.ins(f"v_accvgpr_read_b32 v{tb+i}, a{Oreg(T,a)+8*u+i}", 'valu', [f"a{Oreg(T,a)+8*u+i}"], [f"v{tb+i}"])
                for i in range(8): V("v_mul_f32", f"v{tb+i}", f"v{tb+i}", f"v{vAL[a]}")
                for i in range(4): V("v_cvt_pk_bf16_f32", f"v{tb+8+i}", f"v{tb+2*i}", f"v{tb+2*i+1}")
                fi = a * 12 + 2 * T + u
                e.salu(f"s_add_u32 s39, s38, {(fi // 4) * 4096}")
                e.bstore(('v', tb + 8), 22, SO, 39, (fi % 4) * 1024, flags=STF)
    stamp_flush(e, 0, 5, sW)
    e.label("L_k1_end")
    e.raw("  s_endpgm")
    for p in range(2):
        e.label(f"L_rare1_{p}"); e.clear_hazards(16)
        rare1(e, p, False)
        e.salu(f"s_mov_b32 s{sFLAG}, 1")
        e.clear_hazards(4)
        e.raw("  s_setpc_b64 s[36:37]")
    e.label("L_rare2"); e.clear_hazards(16)
    for T in range(6):
        for a in range(2):
            for i in range(16):
                r_ = Oreg(T, a) + i; tv = f"v{21 + (i % 4)}"
                e.ins(f"v_accvgpr_read_b32 {tv}, a{r_}", 'valu', [f"a{r_}"], [tv])
                V("v_mul_f32", tv, tv, f"v{vAL[a]}")
                e.ins(f"v_accvgpr_write_b32 a{r_}, {tv}", 'valu', [tv], [f"a{r_}"])
    e.salu(f"s_mov_b32 s{sFLAG}, 0")
    e.clear_hazards(4)
    e.raw("  s_setpc_b64 s[36:37]")
```

```python
from emit import *
from k1 import srd, add64, STF
PART = 25165824
PBYTES = 8 * 64 * 20 * 2048
def gen_k2(e, PSC=''):
    V = e.valu
    SO, SWO, SP = 4, 8, 12
    sW, sBB, sNT, sKS, sOB, sKB, sLB = 24, 27, 28, 29, 30, 31, 32
    STG = 20480; NS = 6; NO = 5
    e.raw(".p2align 8"); e.raw(".type oproj_kernel,@function"); e.label("oproj_kernel")
    e.salu("s_cmp_ge_u32 s2, 256"); e.salu("s_cbranch_scc1 L_k2_end")
    stamp(e, 0)
    e.salu("s_load_dwordx2 s[40:41], s[0:1], 32"); e.salu("s_load_dwordx2 s[42:43], s[0:1], 56")
    V("v_and_b32", "v1", 63, "v0"); V("v_lshrrev_b32", "v2", 6, "v0")
    e.ins(f"v_readfirstlane_b32 s{sW}, v2", 'rfl', ["v2"], [f"s{sW}"])
    e.salu(f"s_and_b32 s{sKS}, s2, 7"); e.salu("s_lshr_b32 s37, s2, 3")
    e.salu(f"s_lshr_b32 s{sBB}, s37, 2"); e.salu(f"s_and_b32 s{sNT}, s37, 3")
    e.salu(f"s_mul_i32 s{sKB}, s{sKS}, {768 * 1280}")
    e.salu(f"s_lshl_b32 s37, s{sBB}, 5"); e.salu(f"s_lshl_b32 s38, s{sKS}, 2"); e.salu("s_add_u32 s37, s37, s38"); e.salu("s_lshl_b32 s37, s37, 3")
    e.salu(f"s_lshl_b32 s38, s{sW}, 1", rd=[f"s{sW}"]); e.salu("s_add_u32 s37, s37, s38"); e.salu(f"s_mul_i32 s{sOB}, s37, 12288")
    e.salu(f"s_mul_i32 s{sLB}, s{sW}, 5120")
    e.salu(f"s_mul_i32 s44, s{sNT}, {3 if 'rot3' in OPT else 1}"); e.salu(f"s_add_u32 s44, s44, s{sBB}")
    e.salu("s_sub_u32 s45, s44, 12"); e.salu("s_cmp_ge_u32 s44, 12"); e.salu("s_cselect_b32 s44, s45, s44"); e.salu("s_mov_b32 s45, s44")
    vS = list(range(2, 7)); vO = [12, 13]; vA = 14; vT = 15
    for jj in range(5):
        V("v_mov_b32", "v64", f"s{sW}"); V("v_mul_u32_u24", "v64", 320, "v64"); V("v_add_u32", "v64", "v64", "v1"); V("v_add_u32", "v64", 64 * jj, "v64")
        V("v_mul_u32_u24", "v65", 3277, "v64"); V("v_lshrrev_b32", "v65", 16, "v65")
        V("v_mul_u32_u24", "v66", 20, "v65"); V("v_sub_u32", "v66", "v64", "v66")
        V("v_mul_u32_u24", "v65", 1280, "v65"); V("v_lshlrev_b32", "v66", 4, "v66"); V("v_add_u32", "v65", "v65", "v66")
        V("v_subrev_u32", f"v{vS[jj]}", (jj & 3) * 1024, "v65")
    V("v_lshlrev_b32", f"v{vO[0]}", 4, "v1"); V("v_add_u32", f"v{vO[1]}", 12288, f"v{vO[0]}")
    e.raw("  s_waitcnt lgkmcnt(0)")
    e.salu(f"s_mul_i32 s36, s{sNT}, 320"); add64(e, 40, 41, 36); srd(e, SWO, 40, 41, 0); e.salu(f"s_sub_u32 s{SWO+2}, 7864320, s36")
    srd(e, SO, 42, 43, PART)
    e.salu(f"s_mov_b32 s36, {PART}"); add64(e, 42, 43, 36); srd(e, SP, 42, 43, PBYTES)
    def nextc(reg):
        e.salu(f"s_add_u32 s{reg}, s{reg}, 1"); e.salu(f"s_cmp_eq_u32 s{reg}, 12"); e.salu(f"s_cselect_b32 s{reg}, 0, s{reg}")
    def dma_w(cc):
        st = cc % NS; ops = []
        for jj in range(5):
            def f(jj=jj):
                if jj == 0:
                    e.salu(f"s_mul_i32 s38, s44, {64 * 1280}"); e.salu(f"s_add_u32 s38, s38, s{sKB}"); nextc(44)
                if jj % 4 == 0: e.m0(f"s_add_u32 m0, s{sLB}, {st * STG + jj * 1024}")
                e.dma(vS[jj], SWO, 38, (jj & 3) * 1024, f"w{cc}")
            ops.append(f)
        return ops
    def oset(cc): return 64 + (cc % NO) * 32
    def load_o(cc):
        ops = []
        def so():
            e.salu("s_mul_i32 s46, s45, 43"); e.salu("s_lshr_b32 s46, s46, 7")
            e.salu("s_mul_i32 s47, s46, 3"); e.salu("s_sub_u32 s47, s45, s47")
            e.salu("s_mul_i32 s46, s46, 98304"); e.salu("s_lshl_b32 s47, s47, 12")
            e.salu(f"s_add_u32 s37, s{sOB}, s46"); e.salu("s_add_u32 s37, s37, s47"); nextc(45)
        for t in range(4):
            for a in range(2):
                def f(t=t, a=a):
                    if t == 0 and a == 0: so()
                    e.bload(('v', oset(cc) + (t * 2 + a) * 4), vO[a], SO, 37, t * 1024, f"o{cc}")
                ops.append(f)
        return ops
    for o in dma_w(0) + load_o(0) + dma_w(1): o()
    V("v_bfe_u32", "v16", "v1", 4, 1); V("v_lshrrev_b32", "v17", 5, "v1"); V("v_bfe_u32", "v18", "v1", 2, 2); V("v_and_b32", "v19", 3, "v1")
    V("v_lshlrev_b32", "v17", 2, "v17"); V("v_add_u32", "v17", "v17", "v18"); V("v_mul_u32_u24", "v17", 320, "v17")
    V("v_lshlrev_b32", "v16", 4, "v16"); V("v_add_u32", "v17", "v17", "v16")
    V("v_and_b32", "v16", 1, "v19"); V("v_lshlrev_b32", "v16", 5, "v16"); V("v_add_u32", "v17", "v17", "v16")
    V("v_lshrrev_b32", "v16", 1, "v19"); V("v_lshlrev_b32", "v16", 3, "v16"); V("v_add_u32", f"v{vA}", "v17", "v16")
    V("v_add_u32", f"v{vT}", 3 * STG, f"v{vA}")
    WR = 160; NW = 8; PF = 5
    def wread(cc, f, half):
        t, N5 = divmod(f, 5); st = cc % NS; gf = cc * 20 + f
        va = vA if st < 3 else vT
        off = (st % 3) * STG + (16 * t + 8 * half) * 320 + N5 * 64
        return lambda: e.ds_tr(('a', WR + 4 * (gf % NW) + 2 * half), va, off)
    e.wait_vm_tag("o0"); e.barrier()
    stamp(e, 1)
    for f in range(PF): wread(0, f, 0)(); wread(0, f, 1)()
    BG = 2 * (20 - PF)
    for cc in range(12):
        e.comment(f"chunk {cc}")
        mf = []; fill = {}
        add = lambda g, f: fill.setdefault(g, []).append(f)
        for f in range(20):
            t, N5 = divmod(f, 5); gf = cc * 20 + f
            for a in range(2):
                mf.append(lambda t=t, N5=N5, a=a, gf=gf: e.mfma(('a', (a * 5 + N5) * 16), ('a', WR + 4 * (gf % NW)), ('v', oset(cc) + (t * 2 + a) * 4), 0 if (cc == 0 and t == 0) else None))
            nf = f + PF
            ncc, nf2 = (cc, nf) if nf < 20 else (cc + 1, nf - 20)
            if nf == 20 and cc + 1 < 12:
                add(2 * f - 1, lambda: (e.wait_vm_tag(f"w{cc+1}"), e.barrier()))
            if ncc < 12:
                add(2 * f, wread(ncc, nf2, 0)); add(2 * f + 1, wread(ncc, nf2, 1))
        if cc == 0:
            for k, o in enumerate(load_o(1) + dma_w(2) + load_o(2) + dma_w(3)): add(1 + k, o)
            for k, o in enumerate(load_o(3)): add(BG + k, o)
        elif cc == 1:
            for k, o in enumerate(dma_w(4) + load_o(4) + dma_w(5)): add(1 + k, o)
            for k, o in enumerate(dma_w(6)): add(BG + 2 * k, o)
        elif cc == 2:
            for k, o in enumerate(load_o(5) + load_o(6)): add(1 + k, o)
            for k, o in enumerate(dma_w(7)): add(BG + 2 * k, o)
        else:
            if cc + 4 < 12:
                for k, o in enumerate(load_o(cc + 4)): add(1 + 3 * k, o)
            if cc + 5 < 12:
                for k, o in enumerate(dma_w(cc + 5)): add(BG + 2 * k, o)
        weave(e, mf, fill)
    stamp(e, 2)
    e.clear_hazards(16)
    V("v_lshlrev_b32", "v16", 4, "v1")
    e.salu(f"s_lshl_b32 s36, s{sKS}, 6"); e.salu(f"s_lshl_b32 s37, s{sBB}, 3"); e.salu("s_add_u32 s36, s36, s37")
    e.salu(f"s_lshl_b32 s37, s{sW}, 1"); e.salu("s_add_u32 s36, s36, s37")
    e.salu("s_mul_i32 s36, s36, 20"); e.salu(f"s_mul_i32 s37, s{sNT}, 5"); e.salu("s_add_u32 s36, s36, s37"); e.salu("s_lshl_b32 s38, s36, 11")
    n = 0
    for a in range(2):
        for N5 in range(5):
            e.salu(f"s_add_u32 s39, s38, {(a * 20 + N5) * 2048}")
            for j in range(2):
                tb = 64 + (n % 12) * 12; n += 1
                for i in range(8):
                    ar = (a * 5 + N5) * 16 + 8 * j + i
                    e.ins(f"v_accvgpr_read_b32 v{tb+i}, a{ar}", 'valu', [f"a{ar}"], [f"v{tb+i}"])
                for i in range(4): V("v_cvt_pk_bf16_f32", f"v{tb+8+i}", f"v{tb+2*i}", f"v{tb+2*i+1}")
                e.bstore(('v', tb + 8), 16, SP, 39, j * 1024, flags=STF)
    stamp_flush(e, 1, 3, sW)
    e.label("L_k2_end")
    e.raw("  s_endpgm")

def gen_k3(e):
    V = e.valu
    SP, SOUT = 4, 8
    e.raw(".p2align 8"); e.raw(".type reduce_kernel,@function"); e.label("reduce_kernel")
    e.salu("s_cmp_ge_u32 s2, 320"); e.salu("s_cbranch_scc1 L_k3_end")
    e.salu("s_load_dwordx2 s[40:41], s[0:1], 40"); e.salu("s_load_dwordx2 s[42:43], s[0:1], 56")
    V("v_and_b32", "v1", 63, "v0"); V("v_lshrrev_b32", "v2", 6, "v0")
    e.ins("v_readfirstlane_b32 s24, v2", 'rfl', ["v2"], ["s24"])
    e.salu("s_lshl_b32 s25, s2, 2"); e.salu("s_nop 2"); e.salu("s_add_u32 s25, s25, s24", rd=["s24"])
    e.salu("s_mul_hi_u32 s26, s25, 0xccccccd"); e.salu("s_mul_i32 s27, s26, 20"); e.salu("s_sub_u32 s27, s25, s27")
    V("v_lshlrev_b32", "v2", 4, "v1")
    e.salu("s_lshl_b32 s28, s25, 11")
    e.raw("  s_waitcnt lgkmcnt(0)")
    e.salu(f"s_mov_b32 s36, {PART}"); add64(e, 42, 43, 36); srd(e, SP, 42, 43, PBYTES)
    srd(e, SOUT, 40, 41, 2048 * 640 * 2)
    for ks in range(8):
        e.salu(f"s_add_u32 s29, s28, {ks * 64 * 20 * 2048}")
        for j in range(2): e.bload(('v', 32 + (ks * 2 + j) * 4), 2, SP, 29, j * 1024)
    V("v_and_b32", "v3", 31, "v1"); V("v_mul_u32_u24", "v3", 1280, "v3"); V("v_lshrrev_b32", "v4", 5, "v1"); V("v_lshlrev_b32", "v4", 5, "v4"); V("v_add_u32", "v3", "v3", "v4")
    e.salu("s_mul_i32 s30, s26, 40960"); e.salu("s_lshl_b32 s31, s27, 6"); e.salu("s_add_u32 s30, s30, s31")
    e.salu("s_mov_b32 s33, 0xffff0000")
    for ks in range(8):
        for r in range(8):
            src = f"v{32 + ks * 8 + r}"
            if ks == 0:
                V("v_lshlrev_b32", f"v{16+2*r}", 16, src); V("v_and_b32", f"v{17+2*r}", "s33", src)
            else:
                V("v_lshlrev_b32", "v5", 16, src); V("v_and_b32", "v6", "s33", src)
                V("v_add_f32", f"v{16+2*r}", f"v{16+2*r}", "v5"); V("v_add_f32", f"v{17+2*r}", f"v{17+2*r}", "v6")
    for i in range(8): V("v_cvt_pk_bf16_f32", f"v{8+i}", f"v{16+2*i}", f"v{17+2*i}")
    e.bstore(('v', 8), 3, SOUT, 30, 0); e.bstore(('v', 12), 3, SOUT, 30, 16)
    e.label("L_k3_end")
    e.raw("  s_endpgm")
```
